```python
import torch

def _softmax(x, axis=-1):
    return torch.softmax(x, dim=axis)
def _gelu(x):
    return torch.nn.functional.gelu(x, approximate="tanh")
def _silu(x):
    return torch.nn.functional.silu(x)
def _sigmoid(x):
    return torch.sigmoid(x)
def _layernorm(x, axis=-1, eps=1e-5):
    m = x.mean(dim=axis, keepdim=True)
    v = x.var(dim=axis, keepdim=True, unbiased=False)
    return (x - m) / torch.sqrt(v + eps)
def _scatter_add(tgt, idx, src, axis=0):
    return tgt.clone().index_add_(axis, idx, src)
def _segment_sum(src, seg, n):
    out = torch.zeros((n,) + src.shape[1:], dtype=src.dtype)
    return out.index_add_(0, seg, src)
def _pad(x, pw):
    flat = tuple(v for pair in reversed(pw) for v in pair)
    return torch.nn.functional.pad(x, flat)

kernel_name = 'concat_heads__linear_attn_block__ssm_conv_h3__prompt'

def setup_inputs():

    _w = (lambda a: (lambda t: t.to(torch.bfloat16) if t.is_floating_point() else t)(torch.as_tensor(a)))
    def _A_setup():
        B, S, D = 1, 2048, 1024
        return {
            "x": _w((lambda *s: torch.randn(*s, dtype=torch.bfloat16) * 0.05)(B, S, D)),
            "wqkv": _w((lambda *s: torch.randn(*s, dtype=torch.bfloat16) * 1.6)(D, 3 * D)),
            "wo": _w((lambda *s: torch.randn(*s, dtype=torch.bfloat16) * 0.1)(D, D)),
        }
    _A_in = _A_setup()

    def _B_setup():
        B, S, D = 1, 2048, 1024
        ks = 4
        return {
            "q": _w((lambda *s: torch.randn(*s, dtype=torch.bfloat16) * 0.05)(B, S, D)),
            "k": _w((lambda *s: torch.randn(*s, dtype=torch.bfloat16) * 0.8)(B, S, D)),
            "v": _w((lambda *s: torch.randn(*s, dtype=torch.bfloat16) * 0.4)(B, S, D)),
            "shift_k": _w((lambda *s: torch.randn(*s, dtype=torch.bfloat16) * 0.8)(D, ks) * 0.5),
            "ssm_k": _w((lambda *s: torch.randn(*s, dtype=torch.bfloat16) * 3.2)(D, S) * (1.0 / S ** 0.5)),
            "ssm_D": _w((lambda *s: torch.randn(*s, dtype=torch.bfloat16) * 0.8)(D)),
        }
    _B_in = _B_setup()

    return {
        "A_x": _A_in["x"],
        "A_wqkv": _A_in["wqkv"],
        "A_wo": _A_in["wo"],
        "B_q": _B_in["q"],
        "B_k": _B_in["k"],
        "B_v": _B_in["v"],
        "B_shift_k": _B_in["shift_k"],
        "B_ssm_k": _B_in["ssm_k"],
        "B_ssm_D": _B_in["ssm_D"],
    }

def reference(A_x, A_wqkv, A_wo, B_q, B_k, B_v, B_shift_k, B_ssm_k, B_ssm_D):
    def _A_ref(x, wqkv, wo):
        B, S, D = x.shape
        H = 32; Dh = D // H
        qkv = (lambda x, *d: x.permute(*d))((x @ wqkv).reshape(B, S, 3, H, Dh), 2, 0, 3, 1, 4)
        q, k, v = qkv[0], qkv[1], qkv[2]
        phi = lambda t: torch.where(t > 0, t + 1, torch.exp(t)) + 1e-6
        pq, pk = phi(q), phi(k)
        kv = torch.einsum("bhsd,bhse->bhde", pk, v)
        z = torch.einsum("bhsd->bhd", pk)
        num = torch.einsum("bhqd,bhde->bhqe", pq, kv)
        den = torch.einsum("bhqd,bhd->bhq", pq, z)[..., None] + 1e-6
        o = num / den
        return (lambda x, *d: x.permute(*d))(o, 0, 2, 1, 3).reshape(B, S, D) @ wo

    def _B_ref(q, k, v, shift_k, ssm_k, ssm_D):
        B, S, D = q.shape
        ks = shift_k.shape[-1]
        k_pad = _pad(k, ((0, 0), (ks - 1, 0), (0, 0)))
        k_shift = torch.zeros_like(k)
        for t in range(ks):
            k_shift = k_shift + k_pad[:, t:t + S, :] * shift_k[:, ks - 1 - t][None, None, :]
        kv = k_shift * v
        L = 2 * S
        kv_pad = _pad(kv, ((0, 0), (0, S), (0, 0)))
        kf_pad = _pad(ssm_k, ((0, 0), (0, S)))
        kv_f = (lambda x, axes=(-2,-1): torch.fft.rfft2(x.float(), dim=axes))(kv_pad[:, None, :, :], axes=(1, 2))
        kf_f = (lambda x, axes=(-2,-1): torch.fft.rfft2(x.float(), dim=axes))(kf_pad[:, None, :], axes=(1, 2))
        kf_f = (lambda x, *d: x.permute(*d))(kf_f, 1, 2, 0)
        y_f = kv_f * kf_f[None, :, :, :]
        y = (lambda x, s, axes=(-2,-1): torch.fft.irfft2(x, s=s, dim=axes).to(torch.bfloat16))(y_f, (1, L), axes=(1, 2))[:, 0, :S, :]
        y = y + kv * ssm_D[None, None, :]
        return q * y

    a = _A_ref(A_x, A_wqkv, A_wo)
    b = _B_ref(B_q, B_k, B_v, B_shift_k, B_ssm_k, B_ssm_D)
    return torch.concatenate([a, b], axis=-1)
```

```python
import re

def vr(b, n=1):
    return f"v{b}" if n == 1 else f"v[{b}:{b+n-1}]"
def ar(b, n=1):
    return f"a{b}" if n == 1 else f"a[{b}:{b+n-1}]"
def sr(b, n=1):
    return f"s{b}" if n == 1 else f"s[{b}:{b+n-1}]"

_REG = re.compile(r"^(-?)(?:abs\()?([vas])(?:(\d+)|\[(\d+):(\d+)\])\)?$")

def parse_reg(tok):
    tok = tok.strip()
    if tok.startswith("|") and tok.endswith("|"):
        tok = tok[1:-1]
    if tok.startswith("-|") and tok.endswith("|"):
        tok = tok[2:-1]
    if tok in ("vcc",):
        return {("s", 106), ("s", 107)}
    if tok == "vcc_lo": return {("s", 106)}
    if tok == "vcc_hi": return {("s", 107)}
    if tok == "exec": return {("s", 126), ("s", 127)}
    if tok == "exec_lo": return {("s", 126)}
    if tok == "exec_hi": return {("s", 127)}
    if tok == "m0": return {("s", 124)}
    m = _REG.match(tok)
    if not m:
        return set()
    f = m.group(2)
    if m.group(3) is not None:
        return {(f, int(m.group(3)))}
    return {(f, i) for i in range(int(m.group(4)), int(m.group(5)) + 1)}

TRANS = ("v_exp_f32", "v_log_f32", "v_rcp_f32", "v_rsq_f32", "v_sqrt_f32", "v_sin_f32", "v_cos_f32",
         "v_rcp_iflag_f32", "v_exp_f16", "v_log_f16", "v_rcp_f16")
VCC = {("s", 106), ("s", 107)}
EXEC = {("s", 126), ("s", 127)}
M0 = {("s", 124)}

class Ins:
    __slots__ = ("text", "op", "ops", "mods", "w", "r", "kind", "passes", "srcA", "srcB", "srcC",
                 "label", "target", "data", "dpp", "sdwa", "states", "lds_dma", "wide_store", "laneselect", "vsrc0")
    def __init__(self, text):
        self.text = text
        self.label = None; self.target = None
        self.w = set(); self.r = set(); self.kind = "other"; self.passes = 0
        self.srcA = self.srcB = self.srcC = set(); self.data = set()
        self.dpp = False; self.sdwa = False; self.states = 1; self.lds_dma = False; self.wide_store = False
        self.laneselect = set(); self.vsrc0 = set()
        t = text.split(";")[0].split("//")[0].strip()
        self.op = ""; self.ops = []; self.mods = []
        if not t:
            self.kind = "none"; self.states = 0; return
        if t.endswith(":"):
            self.label = t[:-1]; self.kind = "none"; self.states = 0; return
        if t.startswith("."):
            self.kind = "none"; self.states = 0; return
        parts = t.split(None, 1)
        op = parts[0]
        for suf in ("_e32", "_e64"):
            if op.endswith(suf): op = op[:-4]
        self.op = op
        rest = parts[1] if len(parts) > 1 else ""
        ops = []; cur = ""; depth = 0
        for ch in rest:
            if ch in "[(": depth += 1
            if ch in "])": depth -= 1
            if ch == "," and depth == 0:
                ops.append(cur.strip()); cur = ""
            else:
                cur += ch
        if cur.strip(): ops.append(cur.strip())
        mods = []
        if ops:
            last = ops[-1]; depth = 0; cut = None
            for i, ch in enumerate(last):
                if ch in "[(": depth += 1
                if ch in "])": depth -= 1
                if ch == " " and depth == 0:
                    cut = i; break
            if cut is not None:
                mods = last[cut:].split(); ops[-1] = last[:cut]
        self.ops = ops; self.mods = mods
        self.classify()

    def classify(self):
        op = self.op; ops = self.ops; R = [parse_reg(o) for o in ops]
        def u(lst):
            s = set()
            for x in lst: s |= x
            return s
        if op == "s_nop":
            self.kind = "nop"; self.states = int(ops[0], 0) + 1; return
        if op.startswith("s_cbranch") or op == "s_branch":
            self.kind = "branch"; self.target = ops[0]
            if "vcc" in op: self.r = set(VCC)
            if "exec" in op: self.r = set(EXEC)
            return
        if op == "s_endpgm":
            self.kind = "end"; return
        if op in ("s_waitcnt", "s_barrier", "s_setprio", "s_sleep", "buffer_inv", "buffer_wbl2", "s_sethalt", "s_setreg_imm32_b32"):
            self.kind = "misc"; return
        if op.startswith("v_mfma"):
            self.kind = "mfma"
            self.w = R[0]; self.srcA = R[1]; self.srcB = R[2]; self.srcC = R[3]
            self.r = R[1] | R[2] | R[3]
            if "32x32x16" in op or "32x32x8" in op: self.passes = 8
            elif "16x16x32" in op or "16x16x16" in op: self.passes = 4
            elif "4x4" in op: self.passes = 2
            else: self.passes = 16
            return
        if op.startswith("s_load") or op.startswith("s_buffer_load") or op in ("s_memtime", "s_memrealtime"):
            self.kind = "smem"; self.w = R[0]; self.r = u(R[1:]); return
        if op.startswith("s_atomic"):
            self.kind = "smem"; self.w = R[0]; self.r = u(R); return
        if op.startswith("s_cmp") or op.startswith("s_bitcmp"):
            self.kind = "salu"; self.r = u(R); return
        if op.startswith("s_"):
            self.kind = "salu"; self.w = R[0] if R else set(); self.r = u(R[1:])
            if "saveexec" in op: self.w = self.w | EXEC; self.r |= EXEC
            if op in ("s_addk_i32", "s_mulk_i32", "s_cmovk_i32", "s_cmov_b32", "s_cmov_b64"): self.r |= R[0]
            return
        if op.startswith("ds_"):
            self.kind = "ds"
            if op.startswith("ds_write") or op.startswith("ds_add") and "rtn" not in op:
                self.r = u(R); self.data = u(R[1:])
            else:
                self.w = R[0]; self.r = u(R[1:])
            return
        if op.startswith("buffer_") or op.startswith("global_") or op.startswith("flat_"):
            self.kind = "vmem"
            lds = "lds" in self.mods or "_lds_" in op
            if lds:
                self.lds_dma = True; self.r = u(R) | M0
            elif "load" in op:
                self.w = R[0]; self.r = u(R[1:])
            elif "store" in op:
                self.r = u(R)
                d = R[0] if op.startswith("buffer_") else R[1]
                self.data = d
                if "x3" in op or "x4" in op: self.wide_store = True
            elif "atomic" in op:
                self.r = u(R)
                if "sc0" in self.mods:
                    self.w = R[0]
            return
        if op.startswith("v_"):
            self.kind = "valu"
            if op.endswith("_dpp") or any(m.startswith(("row_", "wave_", "quad_perm", "row_bcast")) for m in self.mods):
                self.dpp = True
            if op.endswith("_sdwa"):
                self.sdwa = True
            base = op.replace("_dpp", "").replace("_sdwa", "")
            if base.startswith("v_cmpx"):
                self.w = R[0] | EXEC; self.r = u(R[1:]); return
            if base.startswith("v_cmp"):
                self.w = R[0]; self.r = u(R[1:]); return
            if base in ("v_readfirstlane_b32",):
                self.w = R[0]; self.r = R[1]; self.vsrc0 = R[1]; return
            if base == "v_readlane_b32":
                self.w = R[0]; self.r = R[1] | R[2]; self.vsrc0 = R[1]; self.laneselect = R[2]; return
            if base == "v_writelane_b32":
                self.w = R[0]; self.r = R[0] | R[1] | R[2]; self.laneselect = R[2]; return
            if base.startswith("v_permlane") and "swap" in base:
                self.w = R[0] | R[1]; self.r = R[0] | R[1]; return
            if base in ("v_add_co_u32", "v_sub_co_u32", "v_subrev_co_u32", "v_addc_co_u32", "v_subb_co_u32", "v_subbrev_co_u32",
                        "v_div_scale_f32", "v_mad_u64_u32", "v_mad_i64_i32"):
                self.w = R[0] | R[1]; self.r = u(R[2:]); return
            self.w = R[0]; self.r = u(R[1:])
            if base in ("v_fmac_f32", "v_dot2c_f32_bf16", "v_pk_fmac_f16", "v_fmac_f16", "v_dot2c_f32_f16", "v_mac_f32"):
                self.r |= R[0]
            if base == "v_cndmask_b32" and len(ops) == 3: self.r |= VCC
            if base == "v_div_fmas_f32": self.r |= VCC
            if self.dpp: self.r |= R[0]
            if self.sdwa and not any(m == "dst_sel:DWORD" for m in self.mods): self.r |= R[0]
            return
        raise ValueError("unknown instruction: " + self.text)

def _vg(s): return {x for x in s if x[0] in "va"}
def _sg(s): return {x for x in s if x[0] == "s"}

def required(p, c):
    need = 0
    pk = p.kind; ck = c.kind
    if pk == "valu":
        pv = _vg(p.w); ps = _sg(p.w)
        isdot = p.op.startswith("v_dot")
        if ck == "mfma" and pv & c.r: need = max(need, 3 if isdot else 2)
        if ck == "mfma" and ps & EXEC: need = max(need, 4)
        if ps:
            if ck == "vmem" and ps & c.r: need = max(need, 5)
            if ck == "valu":
                if ps & c.laneselect: need = max(need, 4)
                if ps & c.r: need = max(need, 2)
                if c.op == "v_div_fmas_f32" and ps & VCC: need = max(need, 4)
                if ps & EXEC:
                    if c.dpp: need = max(need, 5)
                    if c.op.startswith(("v_readlane", "v_readfirstlane", "v_writelane", "v_permlane")): need = max(need, 4)
            if ck == "branch" and ps & c.r: need = max(need, 5 if False else 0)
        if pv:
            if ck == "valu":
                if pv & c.vsrc0: need = max(need, 1)
                if c.dpp and pv & c.r: need = max(need, 2)
                if c.op.startswith("v_permlane") and pv & c.r: need = max(need, 2)
                if p.op in TRANS and c.op not in TRANS and pv & c.r: need = max(need, 1)
                if (p.sdwa or any(m.startswith("op_sel") for m in p.mods)) and pv & (c.r | c.w): need = max(need, 1)
                if isdot and c.op != p.op and pv & (c.r | c.w): need = max(need, 3)
                if isdot and c.op == p.op:
                    ab = set()
                    for o in c.ops[1:3]: ab |= parse_reg(o)
                    if pv & ab: need = max(need, 3)
            if isdot and ck in ("vmem", "ds") and pv & c.r: need = max(need, 3)
    if pk == "mfma":
        P = p.passes
        tab_ab = {2: 5, 4: 8, 8: 12, 16: 20}[P]
        tab_c = {2: 4, 4: 6, 8: 10, 16: 18}[P]
        tab_war = {2: 1, 4: 3, 8: 7, 16: 15}[P]
        if ck == "mfma":
            if p.w & (c.srcA | c.srcB): need = max(need, tab_ab)
            if p.w & c.srcC:
                if p.w == c.srcC and c.passes == P:
                    need = max(need, 2 if P == 2 else 0)
                else:
                    need = max(need, tab_c)
            elif p.w & c.w:
                need = max(need, tab_c)
        elif ck in ("valu", "vmem", "ds"):
            if p.w & (c.r | c.w): need = max(need, tab_ab)
            if ck == "valu" and p.srcC & c.w: need = max(need, tab_war)
    if pk == "salu":
        if p.w & M0 and (c.lds_dma or "addtid" in c.op or c.op.startswith("s_movrel") or c.op == "s_sendmsg"):
            need = max(need, 1)
    if pk == "vmem" and p.wide_store:
        if p.data & c.w:
            need = max(need, 2 if ck in ("valu", "mfma") else 1)
    return need

MAXDIST = 20

class Asm:
    def __init__(self):
        self.lines = []
        self._uid = 0
    def __call__(self, text):
        for l in text.split("\n"):
            l = l.strip()
            if l: self.lines.append(l)
    def label(self, name):
        self.lines.append(name + ":")
    def uid(self, base="L"):
        self._uid += 1
        return f"{base}_{self._uid}"
    def c(self, text):
        self.lines.append("; " + text)

    def fix_hazards(self, verbose=True, insert=True):
        total = 0
        for it in range(50):
            ins = [Ins(l) for l in self.lines]
            labels = {x.label: i for i, x in enumerate(ins) if x.label}
            n = len(ins)
            def succ(i):
                x = ins[i]
                if x.kind == "end": return []
                if x.kind == "branch":
                    t = [labels[x.target]] if x.target in labels else []
                    if x.op == "s_branch": return t
                    return t + ([i + 1] if i + 1 < n else [])
                return [i + 1] if i + 1 < n else []
            fixes = {}
            for i, p in enumerate(ins):
                if p.kind not in ("valu", "mfma", "salu", "vmem"): continue
                if p.kind == "salu" and not (p.w & M0): continue
                if p.kind == "vmem" and not p.wide_store: continue
                lim = MAXDIST if p.kind == "mfma" else 5
                stack = [(j, 0) for j in succ(i)]
                seen = {}
                while stack:
                    j, d = stack.pop()
                    if d >= lim: continue
                    if j in seen and seen[j] <= d: continue
                    seen[j] = d
                    c = ins[j]
                    if c.states and c.kind != "nop":
                        need = required(p, c)
                        if need > d:
                            if need - d > fixes.get(j, (0,))[0]:
                                fixes[j] = (need - d, p.text)
                    for k in succ(j):
                        stack.append((k, d + c.states))
            if not fixes: break
            if not insert:
                for j in sorted(fixes):
                    print(f"HAZARD: need {fixes[j][0]} more before [{ins[j].text}] after [{fixes[j][1]}]")
                return len(fixes)
            j = min(fixes)
            applied = []
            last = -100
            for j in sorted(fixes):
                if j - last < MAXDIST + 2: continue
                applied.append(j); last = j
            for j in reversed(applied):
                k, ptxt = fixes[j]
                if verbose:
                    print(f"  nop x{k} before [{ins[j].text}] after [{ptxt}]")
                nops = []
                while k > 0:
                    m = min(k, 16); nops.append(f"s_nop {m-1}"); k -= m
                self.lines[j:j] = nops
                total += 1
        else:
            raise RuntimeError("hazard fixing did not converge")
        return total

    def text(self):
        out = []
        for l in self.lines:
            if l.endswith(":") or l.startswith("."):
                out.append(l)
            else:
                out.append("    " + l)
        return "\n".join(out) + "\n"

def max_regs(lines):
    mv = -1; ma = -1; ms = -1
    for l in lines:
        x = Ins(l)
        for f, i in (x.r | x.w):
            if f == "v": mv = max(mv, i)
            elif f == "a": ma = max(ma, i)
            elif f == "s" and i < 102: ms = max(ms, i)
    return mv, ma, ms

def kernel_block(name, a, wg_y=False, min_vgpr=0):
    mv, ma, ms = max_regs(a.lines)
    nv = max(mv + 1, min_vgpr, 1)
    acc = (nv + 3) // 4 * 4
    nfv = acc + ma + 1 if ma >= 0 else nv
    if ma < 0: acc = max(4, (nv + 3) // 4 * 4)
    acc = min(acc, 256)
    body = f".globl {name}\n.p2align 8\n.type {name},@function\n{name}:\n" + a.text()
    desc = f""".amdhsa_kernel {name}
  .amdhsa_next_free_vgpr {nfv}
  .amdhsa_next_free_sgpr {max(ms + 1, 8)}
  .amdhsa_accum_offset {acc}
  .amdhsa_group_segment_fixed_size 0
  .amdhsa_kernarg_size 96
  .amdhsa_user_sgpr_count 2
  .amdhsa_user_sgpr_kernarg_segment_ptr 1
  .amdhsa_system_sgpr_workgroup_id_x 1
""" + ("  .amdhsa_system_sgpr_workgroup_id_y 1\n" if wg_y else "") + """  .amdhsa_float_denorm_mode_32 3
  .amdhsa_float_denorm_mode_16_64 3
.end_amdhsa_kernel
"""
    return body, desc

def make_file(header_comments, launches, kernels):
    out = []
    for h in header_comments: out.append("; " + h)
    if len(launches) == 1 and launches[0][0] is None:
        _, g, b, lds = launches[0]
        out.append(f"; @launch grid=({g[0]},{g[1]},{g[2]}) block=({b[0]},{b[1]},{b[2]}) lds={lds}")
    else:
        for k, g, b, lds in launches:
            out.append(f"; @launch kernel={k} grid=({g[0]},{g[1]},{g[2]}) block=({b[0]},{b[1]},{b[2]}) lds={lds}")
    out.append('.amdgcn_target "amdgcn-amd-amdhsa--gfx950"')
    out.append(".text")
    descs = []
    for name, a, opts in kernels:
        b, d = kernel_block(name, a, **opts)
        out.append(b); descs.append(d)
    out.append('.section .rodata,"a"')
    for d in descs:
        out.append(".p2align 6"); out.append(d)
    return "\n".join(out)

def lds_cycles(kind, addrs):
    if kind == "b128":
        groups = [[0,1,2,3,12,13,14,15,20,21,22,23,24,25,26,27],[4,5,6,7,8,9,10,11,16,17,18,19,28,29,30,31]]
        groups += [[x + 32 for x in g] for g in groups]; nb = 64; nd = 4
    elif kind in ("b64", "tr"):
        groups = [list(range(32)), list(range(32, 64))]; nb = 64; nd = 2
    elif kind == "b32":
        groups = [list(range(32)), list(range(32, 64))]; nb = 32; nd = 1
    elif kind == "w128":
        groups = [list(range(8*i, 8*i+8)) for i in range(8)]; nb = 32; nd = 4
    elif kind == "w64":
        groups = [list(range(16*i, 16*i+16)) for i in range(4)]; nb = 32; nd = 2
    elif kind == "w32":
        groups = [list(range(32)), list(range(32, 64))]; nb = 32; nd = 1
    tot = 0
    for g in groups:
        banks = {}
        for l in g:
            for d in range(nd):
                w = addrs[l] // 4 + d
                banks.setdefault(w % nb, set()).add(w)
        tot += max(len(s) for s in banks.values())
    return tot
```

```python
from asmlib import *

WS_PQ = 0
WS_KVP = 4 << 20
WS_ZP = 6 << 20
WS_UT = 8 << 20
WS_O = 16 << 20
WS_YT = 24 << 20
WS_FLAG = 32 << 20
WS_SIZE = 0x10000000

KA = dict(x=0, wqkv=8, wo=16, q=24, k=32, v=40, shift=48, ssm=56, D=64, out=72, dbg=80, ws=88)
LOG2E = 0x3fb8aa3b
EPS = 0x358637bd

def srd(a, d, b, size):
    a(f"s_mov_b32 s{d}, s{b}")
    a(f"s_mov_b32 s{d+1}, s{b+1}")
    a(f"s_mov_b32 s{d+2}, {hex(size)}")
    a(f"s_mov_b32 s{d+3}, 0x00020000")

STAGE = 40960

def gen_k1(R=3, prepass=True, stamp=False):
    a = Asm()
    a("s_cmp_ge_u32 s2, 256")
    a("s_cbranch_scc1 K1_END")
    a(f"s_load_dwordx4 s[4:7], s[0:1], {KA['x']}")
    a(f"s_load_dwordx2 s[8:9], s[0:1], {KA['ws']}")
    a(f"s_load_dwordx4 s[40:43], s[0:1], {KA['k']}")
    a(f"s_load_dwordx2 s[44:45], s[0:1], {KA['shift']}")
    a("v_lshrrev_b32 v1, 6, v0")
    a("v_and_b32 v0, 63, v0")
    a("s_and_b32 s10, s2, 7")
    a("s_lshr_b32 s11, s2, 3")
    a("v_readfirstlane_b32 s3, v1")
    a("s_and_b32 s12, s10, 1")
    a("s_lshl_b32 s12, s12, 3")
    a("s_and_b32 s13, s11, 7")
    a("s_add_u32 s12, s12, s13")
    a("s_lshr_b32 s13, s10, 1")
    a("s_lshl_b32 s13, s13, 2")
    a("s_lshr_b32 s14, s11, 3")
    a("s_add_u32 s13, s13, s14")
    a("s_cmp_ge_u32 s3, 8")
    a("s_cbranch_scc1 K1_PRE")
    a("s_cmp_ge_u32 s3, 4")
    a("s_cbranch_scc1 K1_HELP")

    vRA = [2, 3, 4, 5]; vRB = 6
    FR = [16, 36]
    ACC = 64
    def acc(seg, rt): return ACC + (seg * 2 + rt) * 16
    a("s_lshr_b32 s15, s3, 1")
    a("s_and_b32 s16, s3, 1")
    a("v_and_b32 v7, 31, v0")
    a("v_lshrrev_b32 v8, 5, v0")
    a("v_lshrrev_b32 v9, 1, v7")
    a("v_and_b32 v9, 7, v9")
    a("v_xor_b32 v9, v9, v8")
    a("v_lshlrev_b32 v9, 4, v9")
    a("s_lshl_b32 s17, s15, 13")
    a("v_lshlrev_b32 v10, 7, v7")
    a("v_add3_u32 v2, v10, v9, s17")
    for ks in range(1, 4):
        a(f"v_xor_b32 v{vRA[ks]}, {ks*32}, v2")
    a("v_bfe_u32 v7, v0, 2, 2")
    a("v_lshrrev_b32 v8, 5, v0")
    a("v_lshl_add_u32 v9, v8, 3, v7")
    a("v_lshlrev_b32 v9, 7, v9")
    a("v_bfe_u32 v10, v0, 4, 1")
    a("v_lshlrev_b32 v10, 5, v10")
    a("v_and_b32 v11, 3, v0")
    a("v_lshl_add_u32 v10, v11, 3, v10")
    a("v_bfe_u32 v11, v0, 3, 1")
    a("v_xor_b32 v11, s16, v11")
    a("v_lshl_add_u32 v10, v11, 6, v10")
    a("v_add_u32 v9, v9, v10")
    a(f"v_add_u32 v{vRB}, 16384, v9")
    a(f"s_mov_b32 s18, {hex(EPS)}")
    for i in range(64): a(f"v_mov_b32 v{ACC+i}, s18")
    for i in range(32): a(f"v_mov_b32 v{ACC+64+i}, 0")
    a("s_mov_b32 s19, 0")
    a("s_mov_b32 s20, 0")

    def reads(fs, ks):
        f = FR[fs]
        out = []
        out.append(f"ds_read_b128 {vr(f,4)}, v{vRA[ks]}")
        for jh in range(2):
            out.append(f"ds_read_b64_tr_b16 {vr(f+12+2*jh,2)}, v{vRB} offset:{1*8192 + (16*ks+4*jh)*128}")
        out.append(f"ds_read_b128 {vr(f+4,4)}, v{vRA[ks]} offset:4096")
        for seg in (2, 0):
            for jh in range(2):
                out.append(f"ds_read_b64_tr_b16 {vr(f+8+4*seg+2*jh,2)}, v{vRB} offset:{seg*8192 + (16*ks+4*jh)*128}")
        return out
    def mfmas(fs):
        f = FR[fs]; out = []
        for seg, rt in ((1,0),(1,1),(2,0),(2,1),(0,0),(0,1)):
            d = acc(seg, rt); A = vr(f + 4*rt, 4); B = vr(f + 8 + 4*seg, 4)
            if seg == 0: A, B = B, A
            out.append(f"v_mfma_f32_32x32x16_bf16 {vr(d,16)}, {A}, {B}, {vr(d,16)}")
        return out
    def interleave(ms, rs, pattern):
        ri = 0
        for i, m in enumerate(ms):
            a(m)
            for _ in range(pattern[i]):
                if ri < len(rs): a(rs[ri]); ri += 1
        while ri < len(rs): a(rs[ri]); ri += 1

    a("s_barrier")
    if stamp:
        a("s_memtime s[60:61]")
    for r in reads(0, 0): a(r)
    a(".p2align 6")
    a.label("K1_LOOP")
    for ks in range(4):
        fs = ks & 1
        a("s_waitcnt lgkmcnt(0)")
        if ks < 3:
            interleave(mfmas(fs), reads(fs ^ 1, ks + 1), [2, 2, 2, 2, 0, 0])
        else:
            ms = mfmas(fs)
            a(ms[0])
            a("s_add_u32 s20, s20, 1")
            a(f"s_cmp_eq_u32 s20, {R}")
            a(f"s_cselect_b32 s21, {hex((-(R-1)*STAGE) & 0xffffffff)}, {STAGE}" if False else f"s_cselect_b32 s21, s22, s23")
            a("s_cselect_b32 s20, 0, s20")
            a("s_barrier")
            a(ms[1])
            upd = [f"v_add_u32 v{r}, s21, v{r}" for r in [vRA[0], vRB]]
            for u in upd: a(u)
            rs = reads(fs ^ 1, 0)
            a(rs[0]); a(rs[1])
            a(ms[2])
            a(rs[2]); a(rs[3]); a(rs[4])
            a(ms[3])
            a(rs[5]); a(rs[6]); a(rs[7])
            a(ms[4])
            for r in vRA[1:]: a(f"v_add_u32 v{r}, s21, v{r}")
            a("s_add_u32 s19, s19, 1")
            a("s_cmp_lt_u32 s19, 16")
            a(ms[5])
            a("s_cbranch_scc1 K1_LOOP")
    idx = a.lines.index("s_barrier")
    a.lines[idx:idx] = [f"s_mov_b32 s22, {hex((-(R-1)*STAGE) & 0xffffffff)}", f"s_mov_b32 s23, {STAGE}"]
    if stamp:
        a("s_memtime s[62:63]")

    a("s_waitcnt lgkmcnt(0)")
    srd(a, 24, 8, WS_SIZE)
    a(f"s_mov_b32 s28, {hex(LOG2E)}")
    PK = 16
    T = 8
    def phi_pack(src, dst):
        for i0 in range(0, 16, 4):
            for i in range(4): a(f"v_mul_f32 v{T+i}, s28, v{src+i0+i}")
            for i in range(4): a(f"v_exp_f32 v{T+i}, v{T+i} clamp")
            for i in range(4): a(f"v_max_f32 v{T+4+i}, s18, v{src+i0+i}")
            for i in range(4): a(f"v_add_f32 v{T+i}, v{T+i}, v{T+4+i}")
            a(f"v_cvt_pk_bf16_f32 v{dst+i0//2}, v{T}, v{T+1}")
            a(f"v_cvt_pk_bf16_f32 v{dst+i0//2+1}, v{T+2}, v{T+3}")
    for rt in range(2): phi_pack(acc(1, rt), PK + 8*rt)
    for rt in range(2):
        for i in range(8): a(f"v_cvt_pk_bf16_f32 v{PK+16+8*rt+i}, v{acc(2,rt)+2*i}, v{acc(2,rt)+2*i+1}")
    ONES = 160
    a("s_mov_b32 s29, 0x3f803f80")
    for i in range(4): a(f"v_mov_b32 v{ONES+i}, s29")
    KV = acc(1, 0); Z = acc(1, 1)
    first = True
    for rt in range(2):
        for t in range(2):
            A = vr(PK + 8*rt + 4*t, 4); B = vr(PK + 16 + 8*rt + 4*t, 4)
            a(f"v_mfma_f32_32x32x16_bf16 {vr(KV,16)}, {A}, {B}, {'0' if first else vr(KV,16)}")
            a(f"v_mfma_f32_32x32x16_bf16 {vr(Z,16)}, {A}, {vr(ONES,4)}, {'0' if first else vr(Z,16)}")
            first = False
    for rt in range(2): phi_pack(acc(0, rt), PK + 32 + 8*rt)
    a("v_and_b32 v7, 15, v0")
    a("v_lshlrev_b32 v7, 4, v7")
    a("v_lshrrev_b32 v8, 5, v0")
    a("v_lshl_add_u32 v7, v8, 8, v7")
    a("v_bfe_u32 v8, v0, 4, 1")
    a("v_lshl_add_u32 v9, v8, 15, v7")
    a("v_lshl_add_u32 v10, v8, 11, v7")
    a("s_lshl_b32 s30, s12, 3")
    a("s_lshl_b32 s31, s15, 2")
    a("s_add_u32 s30, s30, s31")
    a("s_lshl_b32 s30, s30, 5")
    a("s_lshl_b32 s31, s13, 1")
    a("s_add_u32 s31, s31, s16")
    a("s_add_u32 s30, s30, s31")
    a("s_lshl_b32 s30, s30, 10")
    if WS_PQ: a(f"s_add_u32 s30, s30, {WS_PQ}")
    a("s_add_u32 s32, s30, 65536")
    for rt in range(2):
        for t in range(2):
            a(f"buffer_store_dwordx4 {vr(PK+32+8*rt+4*t,4)}, v9, s[24:27], s{30 if rt == 0 else 32} offen offset:{t*512}")
    a("v_lshlrev_b32 v11, 4, v0")
    a("s_lshl_b32 s33, s3, 12")
    a("v_add_u32 v12, s33, v11")
    a("s_xor_b32 s33, s33, 8192")
    a("v_add_u32 v13, s33, v11")
    a("s_lshl_b32 s34, s31, 4")
    a("s_add_u32 s34, s34, s12")
    a("s_lshl_b32 s35, s34, 12")
    a(f"s_add_u32 s35, s35, {WS_KVP}")
    a("s_lshl_b32 s36, s15, 9")
    a("s_add_u32 s35, s35, s36")
    a("s_lshl_b32 s34, s34, 7")
    a(f"s_add_u32 s34, s34, {WS_ZP}")
    a("s_lshl_b32 s36, s15, 6")
    a("s_add_u32 s34, s34, s36")
    a("v_lshrrev_b32 v14, 5, v0")
    a("v_lshlrev_b32 v14, 5, v14")
    a("s_cmp_eq_u32 s15, 0")
    a("s_cbranch_scc0 K1_EX1")
    for rh in range(2):
        if rh == 1: a.label("K1_EX1")
        o = 8 * (1 - rh); m = 8 * rh
        a(f"ds_write_b128 v12, {vr(KV+o,4)}")
        a(f"ds_write_b128 v12, {vr(KV+o+4,4)} offset:1024")
        a(f"ds_write_b128 v12, {vr(Z+o,4)} offset:2048")
        a(f"ds_write_b128 v12, {vr(Z+o+4,4)} offset:3072")
        a("s_waitcnt lgkmcnt(0)")
        a("s_barrier")
        a(f"ds_read_b128 {vr(16,4)}, v13")
        a(f"ds_read_b128 {vr(20,4)}, v13 offset:1024")
        a(f"ds_read_b128 {vr(24,4)}, v13 offset:2048")
        a(f"ds_read_b128 {vr(28,4)}, v13 offset:3072")
        a("s_waitcnt lgkmcnt(2)")
        for i in range(8): a(f"v_add_f32 v{16+i}, v{16+i}, v{KV+m+i}")
        a("s_waitcnt lgkmcnt(0)")
        for i in range(8): a(f"v_add_f32 v{24+i}, v{24+i}, v{Z+m+i}")
        if rh == 0: a("s_branch K1_EX2")
    a.label("K1_EX2")
    a("buffer_store_dwordx4 v[16:19], v10, s[24:27], s35 offen")
    a("buffer_store_dwordx4 v[20:23], v10, s[24:27], s35 offen offset:1024")
    a("s_mov_b32 exec_lo, 1")
    a("s_mov_b32 exec_hi, 1")
    a("buffer_store_dwordx4 v[24:27], v14, s[24:27], s34 offen")
    a("buffer_store_dwordx4 v[28:31], v14, s[24:27], s34 offen offset:16")
    if stamp:
        a("s_waitcnt vmcnt(0)")
        a("s_memtime s[64:65]")
        a("s_waitcnt lgkmcnt(0)")
        a("s_sub_u32 s62, s62, s60")
        a("s_sub_u32 s64, s64, s60")
        a("v_mov_b32 v16, s62")
        a("v_mov_b32 v17, s64")
        a("v_mov_b32 v18, s60")
        a("v_mov_b32 v19, s61")
        a("s_lshl_b32 s36, s2, 6")
        a("s_lshl_b32 s37, s3, 4")
        a("s_add_u32 s36, s36, s37")
        a(f"s_add_u32 s36, s36, {hex(WS_FLAG + (1<<20))}")
        a("v_mov_b32 v14, 0")
        a("s_mov_b32 exec_hi, 0")
        a("buffer_store_dwordx4 v[16:19], v14, s[24:27], s36 offen")
    a("s_endpgm")

    a.label("K1_HELP")
    a("s_sub_u32 s3, s3, 4")
    a("s_waitcnt lgkmcnt(0)")
    srd(a, 16, 4, 4 << 20)
    srd(a, 20, 6, 6 << 20)
    a("v_lshrrev_b32 v1, 3, v0")
    a("s_lshl_b32 s15, s3, 3")
    a("v_add_u32 v1, s15, v1")
    a("v_and_b32 v2, 7, v0")
    a("v_lshrrev_b32 v3, 4, v0")
    a("s_and_b32 s15, s3, 1")
    a("s_lshl_b32 s15, s15, 2")
    a("v_add_u32 v4, s15, v3")
    a("v_xor_b32 v4, v4, v2")
    a("v_lshlrev_b32 v4, 4, v4")
    a("v_lshl_add_u32 v10, v1, 11, v4")
    a("v_and_b32 v3, 1, v3")
    a("v_lshlrev_b32 v3, 2, v3")
    a("v_xor_b32 v3, v3, v2")
    a("v_lshlrev_b32 v3, 4, v3")
    a("v_mul_u32_u24 v11, 6144, v1")
    a("v_add_u32 v11, v11, v3")
    a("s_lshl_b32 s24, s12, 18")
    for jj in range(1, 4): a(f"s_add_u32 s{24+jj}, s24, {jj*65536}")
    a("s_lshl_b32 s28, s13, 7")
    for seg in range(3):
        for half in range(2):
            if seg == 0 and half == 0: continue
            a(f"s_add_u32 s{28+seg*2+half}, s28, {seg*2048 + half*32*6144}")
    a("s_lshl_b32 s34, s3, 10")
    a("s_mov_b32 s35, 0")
    a("s_mov_b32 s36, 393216")
    def issue():
        for jj in range(4):
            a(f"s_add_u32 m0, s34, {jj*4096}")
            a(f"buffer_load_dwordx4 v10, s[16:19], s{24+jj} offen lds")
        for seg in (1, 2, 0):
            for half in range(2):
                a(f"s_add_u32 m0, s34, {16384 + seg*8192 + half*4096}")
                a(f"buffer_load_dwordx4 v11, s[20:23], s{28+seg*2+half} offen lds")
        a("v_add_u32 v10, 128, v10")
        a("v_add_u32 v11, s36, v11")
        a(f"s_add_u32 s34, s34, {STAGE}")
        a("s_add_u32 s35, s35, 1")
        a(f"s_cmp_eq_u32 s35, {R}")
        a(f"s_cselect_b32 s37, {R*STAGE}, 0")
        a("s_cselect_b32 s35, 0, s35")
        a("s_sub_u32 s34, s34, s37")
    a("s_mov_b32 s38, 0")
    a.label("K1_HPRO")
    issue()
    a("s_add_u32 s38, s38, 1")
    a(f"s_cmp_lt_u32 s38, {R}")
    a("s_cbranch_scc1 K1_HPRO")
    a(f"s_waitcnt vmcnt({10*(R-1)})")
    a("s_barrier")
    a.label("K1_HLOOP")
    a(f"s_waitcnt vmcnt({10*(R-2)})")
    a("s_barrier")
    issue()
    a("s_add_u32 s38, s38, 1")
    a("s_cmp_lt_u32 s38, 16")
    a("s_cbranch_scc1 K1_HLOOP")
    for j in range(R - 2, -1, -1):
        a(f"s_waitcnt vmcnt({10*j})")
        a("s_barrier")
    a("s_endpgm")
    gen_prepass(a)
    a.label("K1_END")
    a("s_endpgm")
    return a

def gen_prepass(a, nbar0=6, chunk=64):
    a.label("K1_PRE")
    a("s_sub_u32 s3, s3, 8")
    a("s_waitcnt lgkmcnt(0)")
    srd(a, 16, 40, 4 << 20)
    srd(a, 20, 42, 4 << 20)
    srd(a, 24, 44, 8192)
    srd(a, 28, 8, WS_SIZE)
    a("s_lshr_b32 s12, s2, 4")
    a("s_and_b32 s13, s2, 15")
    a("s_lshl_b32 s13, s13, 6")
    a("s_lshl_b32 s14, s3, 5")
    a("s_add_u32 s13, s13, s14")
    a("v_and_b32 v1, 7, v0")
    a("v_lshlrev_b32 v1, 2, v1")
    a("v_add_u32 v1, s13, v1")
    a("v_lshrrev_b32 v2, 3, v0")
    a("s_lshl_b32 s14, s12, 3")
    a("v_add_u32 v2, s14, v2")
    a("v_lshlrev_b32 v3, 15, v2")
    a("v_lshl_add_u32 v3, v1, 1, v3")
    a("v_subrev_u32 v4, 6144, v3")
    a("v_subrev_u32 v5, 2048, v3")
    a("v_lshlrev_b32 v6, 3, v1")
    a("v_lshlrev_b32 v7, 12, v1")
    a("v_lshl_add_u32 v7, v2, 4, v7")
    for i in range(1, 8): a(f"s_movk_i32 s{32+i}, {i*4096}")
    K = 16; V = K + 38; W = V + 32; WF = W + 8; KF = WF + 4; U = KF + 20; UN = U + 16
    UN = (UN + 3) // 4 * 4
    a(f"buffer_load_dwordx4 {vr(W,4)}, v6, s[24:27], 0 offen")
    a(f"buffer_load_dwordx4 {vr(W+4,4)}, v6, s[24:27], 0 offen offset:16")
    a(f"buffer_load_dwordx2 {vr(K,2)}, v4, s[16:19], 0 offen")
    a(f"buffer_load_dwordx2 {vr(K+2,2)}, v4, s[16:19], 0 offen offset:2048")
    a(f"buffer_load_dwordx2 {vr(K+4,2)}, v5, s[16:19], 0 offen")
    for r in range(16):
        so = "0" if r < 2 else f"s{32 + (r>>1)}"
        a(f"buffer_load_dwordx2 {vr(K+6+2*r,2)}, v3, s[16:19], {so} offen offset:{(r&1)*2048}")
    for r in range(16):
        so = "0" if r < 2 else f"s{32 + (r>>1)}"
        a(f"buffer_load_dwordx2 {vr(V+2*r,2)}, v3, s[20:23], {so} offen offset:{(r&1)*2048}")
    a("v_lshlrev_b32 v8, 2, v0")
    a("v_mov_b32 v9, 0")
    a("s_lshl_b32 s14, s2, 5")
    a(f"s_add_u32 s14, s14, {hex(WS_FLAG)}")
    a("s_mov_b64 exec, 0xff")
    a("buffer_store_dword v9, v8, s[28:31], s14 offen")
    a("s_mov_b64 exec, -1")
    a(f"s_mov_b32 s44, {hex(WS_UT)}")
    for c in range(1, 4): a(f"s_mov_b32 s{44+c}, {hex(WS_UT + c*4096)}")
    a("s_mov_b32 s48, 0xffff0000")
    for i in range(nbar0): a("s_barrier")
    a("s_waitcnt vmcnt(0)")
    L = []
    def unpack(dst, src, half):
        L.append(f"v_and_b32 v{dst}, s48, v{src}" if half else f"v_lshlrev_b32 v{dst}, 16, v{src}")
    for c in range(4):
        col = c >> 1; half = c & 1
        for j in range(4): unpack(WF + j, W + 2*c + (j >> 1), j & 1)
        for r in range(19): unpack(KF + r, K + 2*r + col, half)
        for s in range(16): L.append(f"v_mul_f32 v{U+s}, v{WF+3}, v{KF+s}")
        for j in (2, 1, 0):
            for s in range(16): L.append(f"v_fmac_f32 v{U+s}, v{WF+j}, v{KF+s+3-j}")
        for s in range(16): unpack(KF + s, V + 2*s + col, half)
        for s in range(16): L.append(f"v_mul_f32 v{U+s}, v{U+s}, v{KF+s}")
        for rho in range(2):
            for i, (lo, hi) in enumerate(((12, 8), (4, 0), (14, 10), (6, 2))):
                L.append(f"v_cvt_pk_bf16_f32 v{UN+4*rho+i}, v{U+lo+rho}, v{U+hi+rho}")
        for rho in range(2):
            L.append(f"buffer_store_dwordx4 {vr(UN+4*rho,4)}, v7, s[28:31], s{44+c} offen offset:{rho*2048}")
    nb = nbar0
    for i, l in enumerate(L):
        a(l)
        if i % chunk == chunk - 1 and nb < 15:
            a("s_barrier"); nb += 1
    a("s_endpgm")

if __name__ == "__main__":
    import sys
    R = int(sys.argv[1]) if len(sys.argv) > 1 else 3
    a = gen_k1(R=R, stamp=True)
    a.fix_hazards()
    txt = make_file(["k1 test"], [("k1_kernel", (256,1,1), (640,1,1), R*STAGE)], [("k1_kernel", a, {})])
    open(f"k1_R{R}.s", "w").write(txt)
```

```python
from asmlib import *
from k1 import *
from sched import insert_waits

CREG = 13056
H1 = 4160
UOFF = 8320
URHO = 2304
W1 = 4 * CREG
K2_LDS = W1 + 12 * 8192
OFLAG = WS_FLAG
YFLAG = WS_FLAG + 4096
SPIN_MAX = 200000

def poll(a, name, voff, srdws, soff, vtmp, scnt):
    a(f"s_mov_b32 s{scnt}, 0")
    a.label(name)
    a(f"buffer_load_dword v{vtmp}, v{voff}, {srdws}, s{soff} offen sc1")
    a(f"s_add_u32 s{scnt}, s{scnt}, 1")
    a("s_waitcnt vmcnt(0)")
    a(f"v_cmp_ne_u32 vcc, 0, v{vtmp}")
    a(f"s_cmp_gt_u32 s{scnt}, {SPIN_MAX}")
    a(f"s_cbranch_scc1 {name}_X")
    a("s_cmp_eq_u64 vcc, -1")
    a(f"s_cbranch_scc1 {name}_X")
    a("s_sleep 1")
    a(f"s_branch {name}")
    a.label(name + "_X")

def stamp_store(a, regs, slot, srdws, base_s):
    pass

def gen_k2(stamp=False):
    a = Asm()
    st = []
    def T(i):
        if stamp: a(f"s_memtime s[{70+2*i}:{71+2*i}]")
    a("s_cmp_ge_u32 s2, 256")
    a("s_cbranch_scc1 K2_END")
    T(0)
    a(f"s_load_dwordx4 s[4:7], s[0:1], {KA['wo']}")
    a(f"s_load_dwordx4 s[8:11], s[0:1], {KA['ssm']}")
    a(f"s_load_dwordx2 s[12:13], s[0:1], {KA['out']}")
    a(f"s_load_dwordx2 s[14:15], s[0:1], {KA['ws']}")
    a("v_lshrrev_b32 v1, 6, v0")
    a("v_and_b32 v0, 63, v0")
    a("s_and_b32 s16, s2, 7")
    a("s_lshr_b32 s17, s2, 3")
    a("v_readfirstlane_b32 s3, v1")
    a("s_and_b32 s18, s17, 1")
    a("s_lshl_b32 s19, s16, 1")
    a("s_add_u32 s18, s18, s19")
    a("s_lshr_b32 s19, s17, 1")
    a("v_lshlrev_b32 v1, 4, v0")
    a("v_bfe_u32 v2, v0, 4, 1")
    a("v_lshlrev_b32 v2, 2, v2")
    a("v_and_b32 v3, 7, v0")
    a("v_xor_b32 v2, v2, v3")
    a("v_lshlrev_b32 v2, 4, v2")
    a("v_lshrrev_b32 v3, 3, v0")
    a("v_lshl_add_u32 v2, v3, 11, v2")
    a("s_waitcnt lgkmcnt(0)")
    srd(a, 20, 14, WS_SIZE)
    srd(a, 24, 4, 2 << 20)
    srd(a, 28, 12, 8 << 20)
    a("s_cmp_ge_u32 s3, 4")
    a("s_cbranch_scc1 K2_G")

    srd(a, 32, 8, 4 << 20)
    a("s_lshl_b32 s36, s2, 2")
    a("s_add_u32 s36, s36, s3")
    a(f"s_mul_i32 s37, s3, {CREG}")
    a("s_lshl_b32 s38, s36, 12")
    a(f"s_add_u32 s39, s38, {hex(WS_UT)}")
    a("s_add_u32 m0, s37, 32")
    for j in range(4): a(f"buffer_load_dwordx4 v1, s[32:35], s38 offen offset:{j*1024} lds")
    a(f"s_add_u32 m0, s37, {UOFF+256}")
    for j in range(2): a(f"buffer_load_dwordx4 v1, s[20:23], s39 offen offset:{j*1024} lds")
    a(f"s_add_u32 m0, s37, {H1+36}")
    for j in range(4): a(f"buffer_load_dwordx4 v1, s[32:35], s38 offen offset:{j*1024} lds")
    a(f"s_add_u32 m0, s37, {UOFF+URHO+256-2048}")
    for j in range(2, 4): a(f"buffer_load_dwordx4 v1, s[20:23], s39 offen offset:{j*1024} lds")
    a("s_add_u32 s40, s8, s38")
    a("s_addc_u32 s41, s9, 0")
    a("s_load_dword s42, s[40:41], 0")
    a("s_lshl_b32 s43, s36, 1")
    a("s_and_b32 s43, s43, 0xfffffffc")
    a("s_add_u32 s40, s10, s43")
    a("s_addc_u32 s41, s11, 0")
    a("s_load_dword s43, s[40:41], 0")
    a(f"v_add_u32 v4, {UOFF}, v1")
    a(f"v_add_u32 v5, {UOFF+URHO-256}, v1")
    a("v_cmp_gt_u32 vcc, 16, v0")
    a("v_cndmask_b32 v4, v5, v4, vcc")
    a("v_and_b32 v5, 1, v0")
    a("v_lshlrev_b32 v5, 4, v5")
    a("v_bfe_u32 v6, v0, 1, 1")
    a(f"v_mul_u32_u24 v6, {H1}, v6")
    a("v_add_u32 v5, v5, v6")
    a("v_cmp_gt_u32 vcc, 32, v0")
    a("v_cndmask_b32 v4, v5, v4, vcc")
    a("v_add_u32 v4, s37, v4")
    for i in range(4): a(f"v_mov_b32 v{8+i}, 0")
    a("ds_write_b128 v4, v[8:11]")
    a("v_mov_b32 v5, s37")
    a(f"ds_write_b32 v5, v8 offset:{H1+32}")
    vA, vB = 6, 7
    a("v_and_b32 v12, 3, v0")
    a("v_bfe_u32 v13, v0, 2, 2")
    a("v_add_u32 v12, v12, v13")
    a("v_lshlrev_b32 v12, 3, v12")
    a("v_lshrrev_b32 v13, 4, v0")
    a("v_lshl_add_u32 v12, v13, 5, v12")
    a("s_add_u32 s44, s37, 8")
    a(f"v_add_u32 v{vA}, s44, v12")
    a("v_and_b32 v12, 15, v0")
    a("v_sub_u32 v12, v12, v13")
    a("v_lshlrev_b32 v12, 4, v12")
    a(f"s_add_u32 s44, s37, {UOFF+256-64}")
    a(f"v_add_u32 v{vB}, s44, v12")
    AF = 16; BF = 48; ACC = 96
    for i in range(64): a(f"v_mov_b32 v{ACC+i}, 0")
    a("v_subrev_u32 v12, 16, v0")
    a("v_add_u32 v13, 47, v0")
    a("v_cmp_gt_u32 vcc, 16, v0")
    a("v_cndmask_b32 v12, v12, v13, vcc")
    a("v_cmp_eq_u32 s[46:47], 0, v0")
    a("v_mov_b32 v13, 63")
    a("v_cndmask_b32 v12, v12, v13, s[46:47]")
    a("v_lshlrev_b32 v14, 2, v12")
    a("s_waitcnt lgkmcnt(0)")
    a("s_lshl_b32 s42, s42, 16")
    a("s_bitcmp1_b32 s36, 0")
    a("s_cselect_b32 s45, 0, 16")
    a("s_lshl_b32 s43, s43, s45")
    a("s_and_b32 s43, s43, 0xffff0000")
    a("v_mov_b32 v12, s42")
    a("v_add_f32 v12, s43, v12")
    a("v_cvt_pk_bf16_f32 v12, v12, v12")
    a("s_waitcnt vmcnt(0)")
    T(1)
    a("ds_write_b16 v5, v12 offset:32")
    a(f"ds_write_b16 v5, v12 offset:{H1+36}")
    def ldA(nu, nxt):
        return [('ld', 'lgkm', f"ds_read_b64_tr_b16 {vr(AF+4*nu+2*jh,2)}, v{vA} offset:{jh*H1 + nu*512 + 128*nxt}", f"A{nu}") for jh in range(2)]
    def bslot(rho, x): return 8 if (rho == 1 and x == 0) else x
    def ldB(rho, x, nxt):
        s = bslot(rho, x)
        return [('ld', 'lgkm', f"ds_read_b128 {vr(BF+4*s,4)}, v{vB} offset:{rho*URHO + x*256 + 64*(1-nxt)}", f"B{s}")]
    def fix(l):
        out = []
        for k, it in enumerate(l): out.append((it[0], it[1], it[2], it[3] + f".{k}"))
        return out
    def mf(rho, nu, x):
        d = ACC + 32*rho + 4*(nu + x); s = bslot(rho, x)
        return ('use', f"v_mfma_f32_16x16x32_bf16 {vr(d,4)}, {vr(AF+4*nu,4)}, {vr(BF+4*s,4)}, {vr(d,4)}", [f"A{nu}.0", f"A{nu}.1", f"B{s}.0"])
    pro = []
    for k in range(8):
        pro += fix(ldB(0, 7-k, 0)) + fix(ldA(k, 0))
    for it in pro: a(it[2])
    body = []
    pend = []
    def emit(m, after):
        body.append(m); pend.extend(after)
        for _ in range(2):
            if pend: body.append(pend.pop(0))
    first = True
    for x in range(7, -1, -1):
        for nu in range(0, 8 - x):
            after = []
            if first: after += fix(ldB(1, 0, 0)); first = False
            if nu == 7 - x and x >= 1: after += fix(ldB(1, x, 0))
            emit(mf(0, nu, x), after)
    body.append(('i', "@DMA"))
    first = True
    for nu in range(8):
        for x in range(7 - nu, -1, -1):
            after = []
            if first: after += fix(ldB(0, 0, 1)); first = False
            if x == 7 - nu and x >= 1: after += fix(ldB(0, x, 1))
            if x == 0: after += fix(ldA(nu, 1))
            emit(mf(1, nu, x), after)
    while pend: body.append(pend.pop(0))
    lines = insert_waits([(it[1], it[3]) for it in pro], body)
    a("s_mov_b32 s48, 0")
    a("s_add_u32 s49, s3, 12")
    a("s_lshl_b32 s49, s49, 17")
    a("s_lshl_b32 s50, s19, 7")
    a("s_add_u32 s49, s49, s50")
    a(".p2align 6")
    a.label("K2_CLOOP")
    for l in lines:
        if l == "@DMA":
            a("s_cmp_lg_u32 s48, 3")
            a("s_cbranch_scc1 K2_CNODMA")
            for j in range(8):
                a(f"s_add_u32 m0, s37, {j*1024}")
                a(f"s_add_u32 s50, s49, {j*16384}")
                a("buffer_load_dwordx4 v2, s[24:27], s50 offen lds")
            a.label("K2_CNODMA")
        else:
            a(l)
    a(f"v_add_u32 v{vA}, 128, v{vA}")
    a(f"v_subrev_u32 v{vB}, 64, v{vB}")
    a("s_add_u32 s48, s48, 1")
    a("s_cmp_lt_u32 s48, 4")
    a("s_cbranch_scc1 K2_CLOOP")
    T(2)
    a("s_waitcnt lgkmcnt(0)")
    P = 16
    for i in range(8): a(f"ds_bpermute_b32 v{P+1+i}, v14, v{ACC+32+4*i+3}")
    a(f"v_mov_b32 v{P}, 0")
    for i in range(8):
        for r in range(1, 4): a(f"v_add_f32 v{ACC+4*i+r}, v{ACC+4*i+r}, v{ACC+32+4*i+r-1}")
    a("s_waitcnt lgkmcnt(0)")
    for i in range(8): a(f"v_cndmask_b32 v{P+12+i}, v{P+1+i}, v{P+i}, s[46:47]")
    for i in range(8): a(f"v_add_f32 v{ACC+4*i}, v{ACC+4*i}, v{P+12+i}")
    Y = 48
    for i in range(8):
        a(f"v_cvt_pk_bf16_f32 v{Y+2*i}, v{ACC+4*i}, v{ACC+4*i+1}")
        a(f"v_cvt_pk_bf16_f32 v{Y+2*i+1}, v{ACC+4*i+2}, v{ACC+4*i+3}")
    a(f"s_add_u32 s39, s38, {hex(WS_YT)}")
    for ip in range(4): a(f"buffer_store_dwordx4 {vr(Y+4*ip,4)}, v1, s[20:23], s39 offen offset:{ip*1024} sc1")
    a("s_lshl_b32 s40, s36, 2")
    a(f"s_add_u32 s40, s40, {hex(YFLAG)}")
    a("v_mov_b32 v8, 0")
    a("v_mov_b32 v9, 1")
    a("s_waitcnt vmcnt(0)")
    a("s_mov_b64 exec, 1")
    a("buffer_store_dword v9, v8, s[20:23], s40 offen sc1")
    a("s_mov_b64 exec, -1")
    T(3)
    a("s_barrier")
    a("s_cmp_ge_u32 s3, 2")
    a("s_cbranch_scc1 K2_CEND")
    srd(a, 32, 6, 4 << 20)
    a("s_and_b32 s36, s2, 15")
    a("s_lshr_b32 s37, s2, 4")
    a("s_lshl_b32 s37, s37, 4")
    a("s_lshl_b32 s38, s3, 3")
    a("s_add_u32 s37, s37, s38")
    a("v_lshrrev_b32 v3, 3, v0")
    a("v_add_u32 v3, s37, v3")
    a("v_and_b32 v4, 7, v0")
    a("v_lshlrev_b32 v5, 15, v4")
    a("v_lshl_add_u32 v5, v3, 4, v5")
    a("s_lshl_b32 s38, s36, 18")
    a(f"s_add_u32 s38, s38, {hex(WS_YT)}")
    a("v_lshrrev_b32 v6, 6, v3")
    a("v_lshlrev_b32 v6, 9, v6")
    a("v_and_b32 v7, 15, v3")
    a("v_lshl_add_u32 v6, v7, 4, v6")
    a("v_bfe_u32 v7, v3, 4, 2")
    a("v_lshl_add_u32 v6, v7, 2, v6")
    a("v_lshlrev_b32 v4, 4, v4")
    a("v_lshl_add_u32 v7, v6, 11, v4")
    a("v_lshl_add_u32 v6, v6, 12, v4")
    a("s_lshl_b32 s39, s36, 7")
    Q = 16; YY = 48; TT = 80; O = 100
    for j in range(8):
        hf, r = j >> 2, j & 3
        a(f"s_add_u32 s40, s39, {(r>>1)*4096 + hf*256*2048}")
        a(f"buffer_load_dwordx4 {vr(Q+4*j,4)}, v7, s[32:35], s40 offen offset:{(r&1)*2048}")
    a("s_lshl_b32 s41, s36, 8")
    a(f"s_add_u32 s41, s41, {hex(YFLAG)}")
    a("v_lshlrev_b32 v8, 2, v0")
    poll(a, "K2_YPOLL", 8, "s[20:23]", 41, 9, 42)
    T(4)
    for c in range(8):
        a(f"s_add_u32 s40, s38, {c*4096}")
        a(f"buffer_load_dwordx4 {vr(YY+4*c,4)}, v5, s[20:23], s40 offen sc1")
    a("s_mov_b32 s43, 0xffff0000")
    a("s_add_u32 s39, s39, 2048")
    a("s_waitcnt vmcnt(0)")
    T(5)
    for j in range(8):
        hf, r = j >> 2, j & 3
        for c in range(8):
            qs = Q + 4*j + (c >> 1); ys = YY + 4*c + (j >> 1)
            a(f"v_and_b32 v{TT+c}, s43, v{qs}" if c & 1 else f"v_lshlrev_b32 v{TT+c}, 16, v{qs}")
            a(f"v_and_b32 v{TT+8+c}, s43, v{ys}" if j & 1 else f"v_lshlrev_b32 v{TT+8+c}, 16, v{ys}")
        for c in range(8): a(f"v_mul_f32 v{TT+c}, v{TT+c}, v{TT+8+c}")
        for m in range(4): a(f"v_cvt_pk_bf16_f32 v{O+4*j+m}, v{TT+2*m}, v{TT+2*m+1}")
        a(f"s_add_u32 s40, s39, {r*4096 + hf*256*4096}")
        a(f"buffer_store_dwordx4 {vr(O+4*j,4)}, v6, s[28:31], s40 offen")
    a.label("K2_CEND")
    if stamp: stamp_out(a)
    a("s_endpgm")

    a.label("K2_G")
    a("s_sub_u32 s36, s3, 4")
    a("s_and_b32 s37, s36, 1")
    a("s_lshl_b32 s38, s18, 1")
    a("s_add_u32 s37, s37, s38")
    a("s_lshr_b32 s38, s36, 1")
    Z = 8; PQ = 16; KV = 64
    a("v_and_b32 v3, 15, v0")
    a("v_lshlrev_b32 v3, 7, v3")
    a("v_lshrrev_b32 v4, 4, v0")
    a("v_lshl_add_u32 v3, v4, 5, v3")
    a("s_lshl_b32 s39, s37, 11")
    a(f"s_add_u32 s39, s39, {hex(WS_ZP)}")
    a(f"buffer_load_dwordx4 {vr(Z,4)}, v3, s[20:23], s39 offen")
    a(f"buffer_load_dwordx4 {vr(Z+4,4)}, v3, s[20:23], s39 offen offset:16")
    a("s_lshl_b32 s39, s37, 16")
    a("s_lshl_b32 s40, s38, 11")
    a("s_add_u32 s39, s39, s40")
    a(f"s_add_u32 s39, s39, {hex(WS_KVP)}")
    for p in range(16):
        for part in range(2):
            a(f"buffer_load_dwordx4 {vr(KV+8*p+4*part,4)}, v1, s[20:23], s39 offen offset:{part*1024}")
        if p < 15: a("s_add_u32 s39, s39, 4096")
    a("s_lshl_b32 s39, s19, 18")
    a("s_lshl_b32 s40, s37, 10")
    a("s_add_u32 s39, s39, s40")
    if WS_PQ: a(f"s_add_u32 s39, s39, {hex(WS_PQ)}")
    for t in range(8):
        a(f"buffer_load_dwordx4 {vr(PQ+4*t,4)}, v1, s[20:23], s39 offen")
        if t < 7: a("s_add_u32 s39, s39, 32768")
    a("s_waitcnt vmcnt(40)")
    T(1)
    for sh in (8, 4, 2, 1):
        for i in range(8): a(f"v_add_f32_dpp v{Z+i}, v{Z+i}, v{Z+i} row_ror:{sh} row_mask:0xf bank_mask:0xf")
    ZF = 48; KF = 52; EP = 56
    for i in range(4): a(f"v_cvt_pk_bf16_f32 v{ZF+i}, v{Z+2*i}, v{Z+2*i+1}")
    a(f"s_mov_b32 s41, {hex(EPS)}")
    for i in range(4): a(f"v_mov_b32 v{EP+i}, s41")
    for p in range(1, 16):
        a(f"s_waitcnt vmcnt({8 + 2*(15-p)})")
        for i in range(8): a(f"v_add_f32 v{KV+i}, v{KV+i}, v{KV+8*p+i}")
    for i in range(4): a(f"v_cvt_pk_bf16_f32 v{KF+i}, v{KV+2*i}, v{KV+2*i+1}")
    a("s_waitcnt vmcnt(0)")
    T(2)
    NUM = 72; DEN = 104; OO = 136
    for t in range(8):
        a(f"v_mfma_f32_16x16x32_bf16 {vr(DEN+4*t,4)}, {vr(ZF,4)}, {vr(PQ+4*t,4)}, {vr(EP,4)}")
    for t in range(8):
        a(f"v_mfma_f32_16x16x32_bf16 {vr(NUM+4*t,4)}, {vr(KF,4)}, {vr(PQ+4*t,4)}, 0")
    for t in range(8): a(f"v_rcp_f32 v{DEN+4*t}, v{DEN+4*t}")
    for t in range(8):
        for r in range(4): a(f"v_mul_f32 v{NUM+4*t+r}, v{NUM+4*t+r}, v{DEN+4*t}")
    for t in range(8):
        a(f"v_cvt_pk_bf16_f32 v{OO+2*t}, v{NUM+4*t}, v{NUM+4*t+1}")
        a(f"v_cvt_pk_bf16_f32 v{OO+2*t+1}, v{NUM+4*t+2}, v{NUM+4*t+3}")
    a("s_lshl_b32 s39, s19, 18")
    a("s_lshl_b32 s40, s37, 1")
    a("s_add_u32 s40, s40, s38")
    a("s_lshl_b32 s41, s40, 10")
    a("s_add_u32 s39, s39, s41")
    a(f"s_add_u32 s39, s39, {hex(WS_O)}")
    for tp in range(4):
        a(f"v_permlane16_swap_b32 v{OO+4*tp}, v{OO+4*tp+2}")
        a(f"v_permlane16_swap_b32 v{OO+4*tp+1}, v{OO+4*tp+3}")
        a(f"buffer_store_dwordx4 {vr(OO+4*tp,4)}, v1, s[20:23], s39 offen sc1")
        if tp < 3: a("s_add_u32 s39, s39, 65536")
    a("s_lshl_b32 s41, s19, 8")
    a("s_lshl_b32 s40, s40, 2")
    a("s_add_u32 s41, s41, s40")
    a(f"s_add_u32 s41, s41, {hex(OFLAG)}")
    a("v_mov_b32 v8, 0")
    a("v_mov_b32 v9, 1")
    a("s_waitcnt vmcnt(0)")
    a("s_mov_b64 exec, 1")
    a("buffer_store_dword v9, v8, s[20:23], s41 offen sc1")
    a("s_mov_b64 exec, -1")
    T(3)
    a("s_lshl_b32 s42, s36, 10")
    a(f"s_add_u32 s42, s42, {W1}")
    a("s_lshl_b32 s43, s36, 14")
    a("s_lshl_b32 s44, s19, 7")
    a("s_add_u32 s43, s43, s44")
    a("s_mov_b32 s44, 0")
    a.label("K2_WLOOP")
    a("s_mov_b32 m0, s42")
    a("s_add_u32 s42, s42, 4096")
    a("buffer_load_dwordx4 v2, s[24:27], s43 offen lds")
    a("s_add_u32 s43, s43, 65536")
    a("s_add_u32 s44, s44, 1")
    a("s_cmp_lt_u32 s44, 24")
    a("s_cbranch_scc1 K2_WLOOP")
    a("v_bfe_u32 v7, v0, 2, 2")
    a("v_lshrrev_b32 v8, 5, v0")
    a("v_lshl_add_u32 v9, v8, 3, v7")
    a("v_lshlrev_b32 v9, 7, v9")
    a("v_bfe_u32 v10, v0, 4, 1")
    a("v_lshlrev_b32 v10, 5, v10")
    a("v_and_b32 v11, 3, v0")
    a("v_lshl_add_u32 v10, v11, 3, v10")
    a("v_bfe_u32 v11, v0, 3, 1")
    a("v_lshl_add_u32 v10, v11, 6, v10")
    a("v_add_u32 v9, v9, v10")
    VW = [[10, 11], [12, 13], [14, 15]]
    a("v_mov_b32 v14, v9")
    a("v_xor_b32 v15, 64, v9")
    a(f"v_add_u32 v10, {W1}, v14")
    a(f"v_add_u32 v11, {W1}, v15")
    a(f"v_add_u32 v12, {W1+49152}, v14")
    a(f"v_add_u32 v13, {W1+49152}, v15")
    ACC = 16; WF = 48; OF = 64; NOF = 40
    for i in range(32): a(f"v_mov_b32 v{ACC+i}, 0")
    a("s_lshl_b32 s41, s18, 8")
    a(f"s_add_u32 s41, s41, {hex(OFLAG)}")
    a("v_lshlrev_b32 v8, 2, v0")
    poll(a, "K2_OPOLL", 8, "s[20:23]", 41, 9, 42)
    T(4)
    a("s_lshl_b32 s39, s18, 2")
    a("s_add_u32 s39, s39, s36")
    a("s_lshl_b32 s39, s39, 16")
    a(f"s_add_u32 s39, s39, {hex(WS_O)}")
    def ldO(ks):
        out = []
        if ks % 4 == 0 and ks > 0: out.append(('i', "s_add_u32 s39, s39, 4096"))
        out.append(('ld', 'vm', f"buffer_load_dwordx4 {vr(OF+4*(ks%NOF),4)}, v1, s[20:23], s39 offen offset:{(ks%4)*1024} sc1", f"O{ks}"))
        return out
    def ldW(ks):
        c = ks // 4; k4 = ks % 4
        if c < 6: rng, off = 0, c*8192
        elif c < 12: rng, off = 1, (c-6)*8192
        else: rng, off = 2, (c-12)*CREG
        out = []
        for ct in range(2):
            for jh in range(2):
                out.append(('ld', 'lgkm', f"ds_read_b64_tr_b16 {vr(WF+8*(ks&1)+4*ct+2*jh,2)}, v{VW[rng][ct]} offset:{off + (16*k4+4*jh)*128}", f"W{ks}.{ct}.{jh}"))
        return out
    body = []
    for ks in range(NOF): body += ldO(ks)
    body.append(('i', "s_barrier"))
    if stamp: body.append(('i', "s_memtime s[80:81]")); body.append(('i', "s_waitcnt lgkmcnt(0)"))
    body += ldW(0)
    for ks in range(64):
        nw = ldW(ks+1) if ks < 63 else []
        for ct in range(2):
            d = ACC + 16*ct
            body.append(('use', f"v_mfma_f32_32x32x16_bf16 {vr(d,16)}, {vr(WF+8*(ks&1)+4*ct,4)}, {vr(OF+4*(ks%NOF),4)}, {vr(d,16)}",
                         [f"O{ks}", f"W{ks}.{ct}.0", f"W{ks}.{ct}.1"]))
            if ct == 0: body += nw
            if ct == 1 and ks + NOF < 64: body += ldO(ks + NOF)
    for l in insert_waits([], body, loop=False): a(l)
    T(6)
    P = 48
    for ct in range(2):
        for i in range(8): a(f"v_cvt_pk_bf16_f32 v{P+8*ct+i}, v{ACC+16*ct+2*i}, v{ACC+16*ct+2*i+1}")
    a("v_and_b32 v3, 31, v0")
    a("v_lshlrev_b32 v3, 12, v3")
    a("v_lshrrev_b32 v4, 5, v0")
    a("v_lshl_add_u32 v3, v4, 4, v3")
    a("s_lshl_b32 s39, s18, 2")
    a("s_add_u32 s39, s39, s36")
    a("s_lshl_b32 s39, s39, 17")
    a("s_lshl_b32 s40, s19, 7")
    a("s_add_u32 s39, s39, s40")
    for ct in range(2):
        for k in (0, 2):
            b = P + 8*ct + 2*k
            a(f"v_permlane32_swap_b32 v{b}, v{b+2}")
            a(f"v_permlane32_swap_b32 v{b+1}, v{b+3}")
            a(f"buffer_store_dwordx4 {vr(b,4)}, v3, s[28:31], s39 offen offset:{ct*64 + k*16}")
    if stamp: stamp_out(a)
    a("s_endpgm")
    a.label("K2_END")
    a("s_endpgm")
    return a

def stamp_out(a):
    a("s_waitcnt vmcnt(0)")
    a("s_memtime s[84:85]")
    a("s_waitcnt lgkmcnt(0)")
    for i in range(8): a(f"v_mov_b32 v{16+i}, s{70+2*i}")
    a("s_lshl_b32 s36, s2, 8")
    a("s_lshl_b32 s37, s3, 5")
    a("s_add_u32 s36, s36, s37")
    a(f"s_add_u32 s36, s36, {hex(WS_FLAG + (2<<20))}")
    a("v_mov_b32 v14, 0")
    a("s_mov_b64 exec, 1")
    a("buffer_store_dwordx4 v[16:19], v14, s[20:23], s36 offen")
    a("buffer_store_dwordx4 v[20:23], v14, s[20:23], s36 offen offset:16")
```

```python
def insert_waits(prologue_loads, body, loop=True, maxc={'lgkm': 15, 'vm': 63}):
    waits = [dict() for _ in body]
    q = {'lgkm': [], 'vm': []}
    for c, t in prologue_loads: q[c].append(t)
    for rep in range(3 if loop else 1):
        for i, it in enumerate(body):
            if it[0] == 'ld':
                q[it[1]].append(it[3])
            elif it[0] == 'use':
                for c in q:
                    need = None
                    for t in it[2]:
                        if t in q[c]:
                            pos = q[c].index(t)
                            n = len(q[c]) - 1 - pos
                            need = n if need is None else min(need, n)
                    if need is not None:
                        need = min(need, maxc[c])
                        prev = waits[i].get(c)
                        waits[i][c] = need if prev is None else min(prev, need)
                for c, n in waits[i].items():
                    if len(q[c]) > n: q[c] = q[c][len(q[c]) - n:] if n > 0 else []
    out = []
    for i, it in enumerate(body):
        if waits[i]:
            s = "s_waitcnt " + " ".join(f"{'lgkmcnt' if c == 'lgkm' else 'vmcnt'}({n})" for c, n in sorted(waits[i].items(), reverse=True))
            out.append(s)
        out.append(it[1] if it[0] in ('i', 'use') else it[2])
    return out
```

```python
import sys
from asmlib import *
from k1 import *
from k2 import *
NAME = "concat_heads__linear_attn_block__ssm_conv_h3__prompt"
def build(path, stamp=False, R=3, verbose=False):
    a1 = gen_k1(R=R, stamp=stamp); a1.fix_hazards(verbose=verbose)
    a2 = gen_k2(stamp=stamp); a2.fix_hazards(verbose=verbose)
    hdr = ["generated by tools/gen.py (hand-written generator); two launches:",
           " k1: qkv GEMM + phi + kv/z partials + H3 pre-pass;  k2: o + out GEMM, long conv (MFMA Toeplitz) + gating"]
    txt = make_file(hdr, [("k1_kernel", (256,1,1), (640,1,1), R*STAGE), ("k2_kernel", (256,1,1), (512,1,1), K2_LDS)],
                    [("k1_kernel", a1, {}), ("k2_kernel", a2, {})])
    open(path, "w").write(txt)
if __name__ == "__main__":
    build(f"/code/{NAME}.s", verbose=True)
    build("full_stamp.s", stamp=True)
```

```python
import sys
from asmlib import *
from k1 import *
from k2 import *
R = 3
def build(path, order):
    a1 = gen_k1(R=R); a1.fix_hazards(verbose=False)
    a2 = gen_k2(); a2.fix_hazards(verbose=False)
    a3 = Asm(); a3("s_endpgm")
    L = {"1": ("k1_kernel", (256,1,1), (640,1,1), R*STAGE), "2": ("k2_kernel", (256,1,1), (512,1,1), K2_LDS), "e": ("e_kernel", (256,1,1), (64,1,1), 0)}
    txt = make_file(["variant"], [L[c] for c in order], [("k1_kernel", a1, {}), ("k2_kernel", a2, {}), ("e_kernel", a3, {})])
    open(path, "w").write(txt)
for o in ("12", "12e", "e12", "112", "1212", "12eeee"):
    build(f"var_{o}.s", o)
```

```python
from asmlib import *
from sched import insert_waits

WS_KVP = 0
WS_ZP = 1 << 20
WS_FA = WS_ZP + 65536
WS_F4 = WS_FA + 4096
WS_O = 2 << 20
WS_UT = 7 << 20
WS_YT = 12 << 20
OP = 33 * 1024
CP = 4096 + 128
WS_ST = 20 << 20
WS_SIZE = 0x10000000
LOG2E = 0x3fb8aa3b
EPS = 0x358637bd
STAGE = 40960
WSEG = 10240
L_U = 98304; URHO = 2304; USZ = 4608
L_X2 = L_U + 4 * USZ
L_H = 122880; H1 = 4160; HSZ = 8320
L_KH = L_H
L_K = L_H + 384
L_V = L_K + 16384
L_M = L_H + 4 * HSZ
L_FLG = L_M
L_CV = L_M + 32
L_XD = L_M + 64
L_GD = L_M + 80
L_GO = L_M + 96
L_G14 = L_M + 112
L_S15 = L_M + 128
L_EW = L_M + 144
L_EC = L_M + 160
L_GO = L_M + 176
L_GO2S = L_GO - L_S15
L_X0 = L_M + 256
XSZ = 2304
LDS_TOTAL = 163840
SPIN_MAX = 400000
WS = "s[36:39]"
NST = 12
QREG = 200

class G:
    stamp = False

def srd(a, d, b, size):
    a(f"s_mov_b32 s{d}, s{b}")
    a(f"s_mov_b32 s{d+1}, s{b+1}")
    a(f"s_mov_b32 s{d+2}, {hex(size)}")
    a(f"s_mov_b32 s{d+3}, 0x00020000")

def T(a, i):
    if G.stamp: a(f"s_memrealtime s[{70+2*i}:{71+2*i}]")

def stamp_out(a):
    if not G.stamp: return
    a("s_waitcnt vmcnt(0)")
    a(f"s_memrealtime s[{70+2*(NST-1)}:{71+2*(NST-1)}]")
    a("s_memtime s[96:97]")
    a("s_waitcnt lgkmcnt(0)")
    for i in range(NST): a(f"v_mov_b32 v{16+i}, s{70+2*i}")
    a("v_mov_b32 v28, s94")
    a("v_mov_b32 v29, s96")
    a("v_mov_b32 v30, 0")
    a("v_mov_b32 v31, 0")
    a("s_lshl_b32 s40, s2, 9")
    a("s_lshl_b32 s41, s3, 6")
    a("s_add_u32 s40, s40, s41")
    a(f"s_add_u32 s40, s40, {hex(WS_ST)}")
    a("s_lshl_b32 s42, s2, 11")
    a("s_lshl_b32 s41, s3, 8")
    a("s_add_u32 s42, s42, s41")
    a(f"s_add_u32 s42, s42, {hex(WS_ST + (1<<20))}")
    a("v_lshlrev_b32 v14, 2, v0")
    a(f"buffer_store_dword v240, v14, {WS}, s42 offen")
    a("v_mov_b32 v14, 0")
    a("s_mov_b64 exec, 1")
    for i in range(4): a(f"buffer_store_dwordx4 v[{16+4*i}:{19+4*i}], v14, {WS}, s40 offen offset:{16*i}")

def lds_wait(a, name, vaddr, vtmp, sleep=1, off=0):
    a.label(name)
    a(f"ds_read_b32 v{vtmp}, v{vaddr} offset:{off}")
    a("s_waitcnt lgkmcnt(0)")
    a(f"v_cmp_ne_u32 vcc, 1, v{vtmp}")
    a(f"s_cbranch_vccz {name}_X")
    if sleep: a(f"s_sleep {sleep}")
    a(f"s_branch {name}")
    a.label(name + "_X")

def spin(a, name, loads, check, scnt, sleep=0):
    a(f"s_mov_b32 s{scnt}, 0")
    a.label(name)
    for l in loads: a(l)
    a("s_waitcnt vmcnt(0)")
    for c in check: a(c)
    a(f"s_cbranch_vccz {name}_X")
    if sleep: a(f"s_sleep {sleep}")
    a(f"s_add_u32 s{scnt}, s{scnt}, 1")
    a(f"s_cmp_lt_u32 s{scnt}, {SPIN_MAX}")
    a(f"s_cbranch_scc1 {name}")
    a.label(name + "_X")

def gen(stamp=False, opt=None):
    global OUTF
    opt = opt or {}
    OUTF = {0: "", 1: " nt", 2: " sc1", 3: " sc0 sc1"}[opt.get("outf", 0)]
    G.stamp = stamp
    a = Asm()
    a("s_load_dwordx16 s[4:19], s[0:1], 0")
    a("s_cmp_ge_u32 s2, 256")
    a("s_cbranch_scc1 F_END")
    T(a, 0)
    if stamp: a("s_memtime s[94:95]")
    a("v_lshrrev_b32 v1, 6, v0")
    a("v_and_b32 v0, 63, v0")
    a("s_and_b32 s28, s2, 7")
    a("s_lshr_b32 s29, s2, 3")
    a("v_readfirstlane_b32 s3, v1")
    a("s_and_b32 s30, s28, 1")
    a("s_lshl_b32 s30, s30, 3")
    a("s_and_b32 s31, s29, 7")
    a("s_add_u32 s30, s30, s31")
    a("s_lshr_b32 s31, s28, 1")
    a("s_lshl_b32 s31, s31, 2")
    a("s_lshr_b32 s32, s29, 3")
    a("s_add_u32 s31, s31, s32")
    a("s_cmp_lt_u32 s3, 4")
    a("s_cbranch_scc1 F_C")
    gen_L(a, opt)
    a.label("F_C")
    gen_C(a, opt)
    a.label("F_END")
    a("s_endpgm")
    return a

def common2(a):
    a("s_load_dwordx8 s[20:27], s[0:1], 64")
    a("s_and_b32 s32, s29, 3")
    a("s_lshr_b32 s33, s28, 1")
    a("s_lshl_b32 s33, s33, 2")
    a("s_add_u32 s32, s32, s33")
    a("s_and_b32 s33, s28, 1")
    a("s_lshl_b32 s33, s33, 3")
    a("s_lshr_b32 s35, s29, 2")
    a("s_add_u32 s33, s33, s35")
    a("v_lshlrev_b32 v1, 4, v0")

def handoff_addrs(a, w, d):
    a(f"s_and_b32 s40, s{w}, 1")
    a("s_lshl_b32 s41, s31, 1")
    a("s_add_u32 s40, s40, s41")
    a(f"s_lshr_b32 s41, s{w}, 1")
    a(f"s_lshl_b32 s{d+2}, s30, 1")
    a(f"s_add_u32 s{d+2}, s{d+2}, s41")
    a(f"s_mul_i32 s{d+2}, s{d+2}, {4*OP//1024}")
    a(f"s_add_u32 s{d+2}, s{d+2}, s40")
    a(f"s_lshl_b32 s{d+2}, s{d+2}, 10")
    a(f"s_add_u32 s{d+2}, s{d+2}, {hex(WS_O)}")
    a(f"s_lshl_b32 s{d}, s40, 15")
    a(f"s_lshl_b32 s{d+1}, s41, 10")
    a(f"s_add_u32 s{d+3}, s{d}, s{d+1}")
    a(f"s_lshl_b32 s{d}, s30, 11")
    a(f"s_add_u32 s{d}, s{d}, s{d+3}")
    a("s_lshl_b32 s40, s40, 11")
    a(f"s_add_u32 s{d+4}, s40, s{d+1}")
    a(f"s_add_u32 s{d+4}, s{d+4}, {hex(WS_ZP)}")
    a(f"s_lshl_b32 s{d+1}, s30, 6")
    a(f"s_add_u32 s{d+1}, s{d+1}, s{d+4}")

def gen_C(a, opt):
    vX = [2, 3]; vW = [4, 5]
    XF = 16; WF = 80; ACC = 104
    vXo, vXp, vZo, vZp, vFo, vFp, vQ16, vZL = 6, 7, 8, 9, 10, 11, 12, 13
    vK = [200, 201, 202, 203]; vGD, vGO, vXD, vO0, vPR, vCV, vOUT, vONE = 204, 205, 206, 207, 208, 209, 210, 14
    common2(a)
    a("s_lshr_b32 s34, s3, 1")
    a("s_and_b32 s35, s3, 1")
    a("v_and_b32 v16, 15, v0")
    a("v_lshrrev_b32 v17, 4, v0")
    a("v_lshrrev_b32 v18, 1, v16")
    a("v_xor_b32 v18, v18, v17")
    a("v_lshlrev_b32 v18, 4, v18")
    a("v_and_b32 v19, 7, v0")
    a("v_lshl_add_u32 v18, v19, 7, v18")
    a("v_bfe_u32 v19, v0, 3, 1")
    a(f"v_mul_u32_u24 v19, {WSEG}, v19")
    a("s_lshl_b32 s40, s34, 11")
    a(f"s_add_u32 s40, s40, {STAGE}")
    a(f"v_add3_u32 v{vX[0]}, v18, v19, s40")
    a(f"v_xor_b32 v{vX[1]}, 64, v{vX[0]}")
    a("v_bfe_u32 v18, v0, 2, 2")
    a("v_lshlrev_b32 v18, 7, v18")
    a("v_and_b32 v19, 3, v0")
    a("v_lshl_add_u32 v18, v19, 3, v18")
    a("v_bfe_u32 v19, v0, 3, 2")
    a("v_lshlrev_b32 v19, 5, v19")
    a(f"v_lshl_add_u32 v{vO0}, v17, 9, v18")
    a(f"v_add_u32 v{vO0}, v{vO0}, v19")
    a("s_lshl_b32 s40, s35, 6")
    a("s_lshl_b32 s41, s34, 5")
    a("s_or_b32 s40, s40, s41")
    a("v_xor_b32 v19, s40, v19")
    a(f"v_mul_u32_u24 v20, {WSEG}, v17")
    a("v_add3_u32 v18, v18, v19, v20")
    a(f"v_add_u32 v{vW[0]}, {STAGE + 4096}, v18")
    a(f"v_xor_b32 v{vW[1]}, 32, v{vW[0]}")
    a("v_mov_b32 v18, 0")
    a("v_lshlrev_b32 v19, 2, v0")
    a(f"v_add_u32 v20, {L_M}, v19")
    a("ds_write_b32 v20, v18")
    a(f"s_mov_b32 s42, {hex(EPS)}")
    a(f"s_mov_b32 s43, {hex(LOG2E)}")
    a("s_mov_b32 s49, 0x3f803f80")
    order = [(1,0),(1,1),(2,0),(2,1),(0,0),(0,1)]
    def acc(j, i): return ACC + (j*4 + i)*4
    for j in range(6):
        for i in range(16): a(f"v_mov_b32 v{ACC+16*j+i}, {'0' if order[j][0] == 2 else 's42'}")
    handoff_addrs(a, 3, 50)
    a(f"s_mul_i32 s40, s35, {XSZ}")
    a(f"s_add_u32 s58, s40, {L_X0}")
    a(f"s_add_u32 s59, s40, {L_X2}")
    a("s_cmp_eq_u32 s34, 0")
    a("s_cselect_b32 s40, s58, s59")
    a("s_cselect_b32 s41, s59, s58")
    a(f"v_lshlrev_b32 v{vQ16}, 4, v17")
    a(f"v_add_u32 v{vXo}, s40, v1")
    a(f"v_add_u32 v{vXp}, s41, v1")
    a(f"v_add_u32 v{vZo}, s40, v{vQ16}")
    a(f"v_add_u32 v{vZp}, s41, v{vQ16}")
    a("s_lshl_b32 s40, s3, 3")
    a(f"s_add_u32 s41, s40, {L_FLG}")
    a(f"v_mov_b32 v{vFo}, s41")
    a(f"v_xor_b32 v{vFp}, 16, v{vFo}")
    a(f"v_lshl_add_u32 v{vZL}, v16, 6, v{vQ16}")
    a("s_lshl_b32 s40, s34, 3")
    a("s_add_u32 s41, s59, s40")
    a(f"v_add_u32 v{vK[0]}, s41, v1")
    a(f"v_xor_b32 v{vK[1]}, 8, v{vK[0]}")
    a("s_add_u32 s41, s58, s40")
    a(f"v_add_u32 v{vK[3]}, s41, v1")
    a(f"v_xor_b32 v{vK[2]}, 8, v{vK[3]}")
    a("s_lshl_b32 s40, s3, 2")
    a(f"s_add_u32 s41, s40, {L_GD}")
    a(f"v_mov_b32 v{vGD}, s41")
    a(f"s_add_u32 s41, s40, {L_XD}")
    a(f"v_mov_b32 v{vXD}, s41")
    a("v_lshlrev_b32 v18, 1, v17")
    a("v_and_b32 v20, 7, v0")
    a("v_xor_b32 v18, v18, v20")
    a("v_lshlrev_b32 v18, 4, v18")
    a("v_lshrrev_b32 v20, 3, v0")
    a("v_lshl_add_u32 v205, v20, 11, v18")
    a(f"v_mov_b32 v{vONE}, 1")
    a("v_and_b32 v18, 12, v19")
    a(f"v_add_u32 v{vCV}, {L_M}, v18")
    a(f"v_add_u32 v211, {L_EW - L_M}, v{vCV}")
    a(f"v_add_u32 v20, {L_EC - L_M}, v{vCV}")
    a("v_subrev_u32 v21, 12, v0")
    a("v_cmp_gt_u32 vcc, 12, v21")
    a("v_and_b32 v18, 4, v19")
    a(f"v_add_u32 v18, {L_CV + 16}, v18")
    a("v_cndmask_b32 v211, v211, v20, vcc")
    a("v_and_b32 v21, 31, v0")
    a("v_cmp_lt_u32 vcc, 23, v21")
    a("s_nop 1")
    a("v_cndmask_b32 v211, v211, v18, vcc")
    a("s_lshl_b32 s55, s32, 2")
    a("s_add_u32 s55, s55, s3")
    a("s_lshl_b32 s56, s55, 17")
    a("s_lshl_b32 s40, s33, 7")
    a("s_add_u32 s56, s56, s40")
    a(f"s_mul_i32 s55, s55, {2*OP}")
    a(f"s_add_u32 s55, s55, {hex(WS_O)}")
    if opt.get("pr32", 1):
        a("v_and_b32 v18, 31, v0")
        a("v_add_u32 v18, 33, v18")
    else:
        a("v_lshrrev_b32 v18, 5, v0")
        a("v_add_u32 v18, v18, v0")
    a(f"v_lshlrev_b32 v{vPR}, 10, v18")
    a("s_and_b32 s57, s33, 7")
    a("s_mul_i32 s57, s57, 3")
    a("s_lshr_b32 s57, s57, 2" if opt.get("rot2", 1) else "s_mov_b32 s57, 0")
    a(f"v_lshlrev_b32 v{vOUT}, 12, v16")
    a("v_bfe_u32 v18, v0, 4, 1")
    a(f"v_lshl_add_u32 v{vOUT}, v18, 5, v{vOUT}")
    a("v_lshrrev_b32 v18, 5, v0")
    a(f"v_lshl_add_u32 v{vOUT}, v18, 4, v{vOUT}")
    a("s_mov_b32 s44, 0")
    a("s_mov_b32 s45, 1")
    a(f"s_mov_b32 s46, {hex((-2*STAGE) & 0xffffffff)}")
    a(f"s_mov_b32 s47, {STAGE}")
    a("s_waitcnt lgkmcnt(0)")
    srd(a, 36, 26, WS_SIZE)
    srd(a, 60, 22, 8 << 20)
    srd(a, 64, 26, WS_SIZE)
    srd(a, 4, 8, 2 << 20)
    a("s_lshl_b32 s68, s3, 10")
    a("s_lshl_b32 s69, s3, 14")
    a("s_lshl_b32 s40, s33, 7")
    a("s_add_u32 s69, s69, s40")

    def ldX(par, i, ks):
        return ('ld', 'lgkm', f"ds_read_b128 {vr(XF+par*32+(i*2+ks)*4,4)}, v{vX[ks]} offset:{(i&1)*2*WSEG + (i>>1)*1024}", f"X{par}.{i}.{ks}")
    def ldW(j):
        seg, half = order[j]; b = j % 3; out = []
        for ks in range(2):
            for jh in range(2):
                out.append(('ld', 'lgkm', f"ds_read_b64_tr_b16 {vr(WF+b*8+ks*4+jh*2,2)}, v{vW[half]} offset:{(ks*3+seg)*1024 + jh*512}", f"W{b}.{ks}.{jh}"))
        return out
    def mf(par, j, i, ks):
        b = j % 3; d = acc(j, i)
        A = vr(XF+par*32+(i*2+ks)*4, 4); B = vr(WF+b*8+ks*4, 4)
        if order[j][0] == 0: A, B = B, A
        return ('use', f"v_mfma_f32_16x16x32_bf16 {vr(d,4)}, {A}, {B}, {vr(d,4)}", [f"X{par}.{i}.{ks}", f"W{b}.{ks}.0", f"W{b}.{ks}.1"])
    a("s_barrier")
    T(a, 1)
    pro = ldW(0)[:2] + [ldX(0,0,0)] + ldW(0)[2:] + [ldX(0,0,1), ldX(0,1,0), ldX(0,1,1), ldX(0,2,0), ldX(0,2,1)] + ldW(1) + [ldX(0,3,0), ldX(0,3,1)]
    for it in pro: a(it[2])
    body = []
    for par in range(2):
        pend = []; np_ = par ^ 1
        for j in range(6):
            if j <= 3: pend += ldW(j+2)
            n = 0
            for i in range(4):
                for ks in range(2):
                    m = mf(par, j, i, ks); n += 1
                    b = j % 3
                    if n == 1: m = (m[0], m[1], m[2] + [f"W{b}.1.0", f"W{b}.1.1"] + ([f"X{par}.0.1", f"X{par}.1.0", f"X{par}.1.1"] if j == 0 else []))
                    if n == 5 and j == 0: m = (m[0], m[1], m[2] + [f"X{par}.3.0", f"X{par}.3.1", f"X{par}.2.1", "W1.0.0", "W1.0.1", "W1.1.0", "W1.1.1"])
                    if n == 1 and j == 4: m = (m[0], m[1], m[2] + ["W2.0.0", "W2.0.1", "W2.1.0", "W2.1.1"])
                    body.append(m)
                    per = 1
                    if j == 3 and n == 5:
                        pend += [('i', "s_add_u32 s45, s45, 1"), ('i', "s_cmp_eq_u32 s45, 3"), ('i', "s_cselect_b32 s48, s46, s47"), ('i', "s_cselect_b32 s45, 0, s45")]
                    if j == 3 and n >= 5: per = 2
                    if j == 3 and n == 7:
                        pend += [('i', f"v_add_u32 v{r}, s48, v{r}") for r in (vW[0], vX[0], vX[1], vW[1])]
                    if j == 2 and n == 6 and par == 0: pend += [('i', "s_add_u32 s44, s44, 1")]
                    if j == 4 and n == 1:
                        w0 = ldW(0)
                        pend += [('i', f"@BAR{par}")] + w0[:2] + [ldX(np_,0,0)] + w0[2:] + [ldX(np_,0,1), ldX(np_,1,0), ldX(np_,1,1)]
                    if j == 4 and n in (2, 3): per = 2
                    if j == 5 and n == 1:
                        pend += [ldX(np_,2,0), ldX(np_,2,1)] + ldW(1) + [ldX(np_,3,0), ldX(np_,3,1)]
                    if j == 5 and n <= 3: per = 2
                    if n == 8 and j not in (3,): per = 0
                    for _ in range(per):
                        if pend: body.append(pend.pop(0))
            assert not pend, (j, pend)
    lines = insert_waits([(it[1], it[3]) for it in pro], body)
    a(".p2align 6")
    a.label("F_CLOOP")
    for l in lines:
        if l.startswith("@BAR"):
            par = l[4:]
            a("s_cmp_lt_u32 s44, 8")
            a(f"s_cbranch_scc0 F_CNB{par}")
            a("s_barrier")
            a.label(f"F_CB{par}")
        else: a(l)
    a("s_cbranch_scc1 F_CLOOP")
    if opt.get("cprio", 1): a("s_setprio 3")
    T(a, 2)
    if opt.get("g1only"):
        stamp_out(a); a("s_endpgm"); gen_C_tail(a, vGD, vONE, vCV); return

    PKF = 212; VF = 228; TT = 244; ONES = 252
    KV = acc(2, 0); Z = acc(3, 0); PQF = 84
    def phi8(s0, s1, dst):
        src = [s0+i for i in range(4)] + [s1+i for i in range(4)]
        for i in range(8): a(f"v_mul_f32 v{TT+i}, s43, v{src[i]}")
        for i in range(8): a(f"v_exp_f32 v{TT+i}, v{TT+i} clamp")
        for i in range(8): a(f"v_max_f32 v{src[i]}, s42, v{src[i]}")
        for i in range(8): a(f"v_add_f32 v{TT+i}, v{TT+i}, v{src[i]}")
        for i in range(4): a(f"v_cvt_pk_bf16_f32 v{dst+i}, v{TT+2*i}, v{TT+2*i+1}")
    phi8(acc(0, 0), acc(0, 1), PKF)
    for i in range(4): a(f"v_mov_b32 v{ONES+i}, s49")
    for u in range(2):
        for i in range(4):
            s = acc(2+u, i); d = VF + u*8 + i*2
            a(f"v_cvt_pk_bf16_f32 v{d}, v{s}, v{s+1}")
            a(f"v_cvt_pk_bf16_f32 v{d+1}, v{s+2}, v{s+3}")
    seq = [(0,0),(1,0),(0,1),(1,1)]
    for n, (t, rho) in enumerate(seq):
        A = vr(PKF + (n & 1)*4, 4)
        ms = []
        for u in (1, 0):
            d = KV + (t*2+u)*4
            ms.append(f"v_mfma_f32_16x16x32_bf16 {vr(d,4)}, {A}, {vr(VF+u*8+rho*4,4)}, {'0' if rho == 0 else vr(d,4)}")
        d = Z + t*4
        ms.append(f"v_mfma_f32_16x16x32_bf16 {vr(d,4)}, {A}, {vr(ONES,4)}, {'0' if rho == 0 else vr(d,4)}")
        for m in ms: a(m)
        if n < 3:
            t2, r2 = seq[n+1]
            phi8(acc(t2, 2*r2), acc(t2, 2*r2+1), PKF + ((n+1) & 1)*4)
    a(f"ds_write_b128 v{vXo}, {vr(KV+4,4)}")
    a(f"ds_write_b128 v{vXo}, {vr(KV+12,4)} offset:1024")
    a(f"ds_write_b128 v{vZo}, {vr(Z+4,4)} offset:2048")
    a(f"ds_write_b32 v{vFo}, v{vONE}")
    R0 = 212
    a.label("F_XA")
    a(f"ds_read_b32 v15, v{vFp}")
    a(f"ds_read_b128 {vr(R0,4)}, v{vXp} offset:1024")
    a(f"ds_read_b128 {vr(R0+4,4)}, v{vXp}")
    a(f"ds_read_b128 {vr(R0+8,4)}, v{vZp} offset:2048")
    a("s_waitcnt lgkmcnt(0)")
    a("v_cmp_ne_u32 vcc, 1, v15")
    a("s_cbranch_vccnz F_XA")
    for i in range(4): a(f"v_add_f32 v{R0+i}, v{R0+i}, v{KV+i}")
    for i in range(4): a(f"v_add_f32 v{R0+4+i}, v{R0+4+i}, v{KV+8+i}")
    for i in range(4): a(f"v_cvt_pk_bf16_f32 v{R0+12+i}, v{R0+2*i}, v{R0+2*i+1}")
    a(f"buffer_store_dwordx4 {vr(R0+12,4)}, v1, {WS}, s50 offen sc1")
    for i in range(4): a(f"v_add_f32 v{R0+8+i}, v{R0+8+i}, v{Z+i}")
    a("s_mov_b32 exec_lo, 0x00010001")
    a("s_mov_b32 exec_hi, 0x00010001")
    a(f"buffer_store_dwordx4 {vr(R0+8,4)}, v{vQ16}, {WS}, s51 offen sc1")
    a("s_mov_b64 exec, -1")
    T(a, 3)
    ZL = 100; KL = 16; KS = 104; EP = 112; SEL = 140; KF = 124; ZF = 132
    lds_wait(a, "F_WGO", vCV, 15, off=L_GO - L_M)
    lds_wait(a, "F_WGD2", vCV, 15, off=L_GD - L_M)
    a(f"buffer_load_dwordx4 {vr(ZL,4)}, v{vZL}, {WS}, s54 offen sc1")
    NQ1 = opt.get("nq1", 4)
    for i in range(NQ1): phi8(acc(4, i), acc(5, i), PQF + i*4)
    a("s_waitcnt vmcnt(0)")
    a(f"v_cmp_eq_u32 s[40:41], -1, v{ZL}")
    a("s_cmp_lg_u64 s[40:41], 0")
    a("s_cbranch_scc1 F_K1N")
    kv_issue(a, KL, opt)
    a("s_mov_b32 s58, 1")
    a("s_branch F_K1X")
    a.label("F_K1N")
    a(f"buffer_load_dwordx4 {vr(ZL,4)}, v{vZL}, {WS}, s54 offen sc1")
    a("s_mov_b32 s58, 0")
    a.label("F_K1X")
    for i in range(NQ1, 4): phi8(acc(4, i), acc(5, i), PQF + i*4)
    for i in range(4): a(f"v_mov_b32 v{EP+i}, s42")
    a("v_bfe_u32 v116, v0, 2, 2")
    a("v_lshrrev_b32 v117, 4, v0")
    a("v_cmp_eq_u32 vcc, v116, v117")
    a("v_and_b32 v116, 1, v0")
    a("v_lshlrev_b32 v116, 4, v116")
    a("v_mov_b32 v117, 0x3f80")
    a("v_lshlrev_b32 v116, v116, v117")
    a("v_cndmask_b32 v116, 0, v116, vcc")
    a("v_and_b32 v117, 2, v0")
    a("v_cmp_eq_u32 vcc, 0, v117")
    for r in (2, 3, 4, 5): a(f"v_mov_b32 v{SEL+r}, 0")
    a(f"v_cndmask_b32 v{SEL}, 0, v116, vcc")
    a(f"v_cndmask_b32 v{SEL+6}, 0, v116, vcc")
    a(f"v_cndmask_b32 v{SEL+1}, v116, v{SEL+2}, vcc")
    a(f"v_cndmask_b32 v{SEL+7}, v116, v{SEL+2}, vcc")
    T(a, 4)
    a("s_cmp_eq_u32 s58, 1")
    a("s_cbranch_scc1 F_K2")
    a("s_waitcnt vmcnt(0)")
    a(f"v_cmp_eq_u32 vcc, -1, v{ZL}")
    a("s_cbranch_vccz F_P2_X")
    spin(a, "F_P2", [f"buffer_load_dwordx4 {vr(ZL,4)}, v{vZL}, {WS}, s54 offen sc1"], [f"v_cmp_eq_u32 vcc, -1, v{ZL}"], 45, sleep=opt.get("sl2", 1))
    T(a, 5)
    kv_issue(a, KL, opt)
    a.label("F_K2")
    for i in range(4): a(f"v_add_f32_dpp v{120+i}, v{ZL+i}, v{ZL+i} row_ror:8 row_mask:0xf bank_mask:0xf")
    for sh in (4, 2, 1):
        for i in range(4): a(f"v_add_f32_dpp v{120+i}, v{120+i}, v{120+i} row_ror:{sh} row_mask:0xf bank_mask:0xf")
    a(f"v_cvt_pk_bf16_f32 v{ZF}, v120, v121")
    a(f"v_cvt_pk_bf16_f32 v{ZF+1}, v122, v123")
    a("v_mov_b32 v15, 0")
    for p in range(16):
        if p % 2 == 0: a(f"s_waitcnt vmcnt({14-p})")
        for t in range(2):
            a(f"v_mfma_f32_16x16x32_bf16 {vr(KS+4*t,4)}, {vr(SEL+4*t,4)}, {vr(KL+4*p,4)}, {'0' if p == 0 else vr(KS+4*t,4)}")
        if p % 2 == 0: a(f"v_max3_u32 v15, v15, v{KL+4*p}, v{KL+4*p+4}")
    a("v_cmp_eq_u32 vcc, -1, v15")
    a("s_cbranch_vccz F_K2X")
    a("s_add_u32 s58, s58, 2")
    a(f"s_cmp_gt_u32 s58, {SPIN_MAX}")
    a("s_cbranch_scc0 F_P2_X")
    a.label("F_K2X")
    for i in range(4): a(f"v_cvt_pk_bf16_f32 v{136+i}, v{KS+2*i}, v{KS+2*i+1}")
    T(a, 6)
    a(f"ds_write_b128 v{vXp}, {vr(136,4)}")
    a(f"ds_write_b64 v{vZp}, {vr(ZF,2)} offset:2048")
    a(f"ds_write_b32 v{vFo}, v{vONE} offset:4")
    wo_c(a, range(0, 5))
    a.label("F_XB")
    a(f"ds_read_b32 v15, v{vFp} offset:4")
    a(f"ds_read_b64 {vr(ZF+2,2)}, v{vZo} offset:2048")
    for k in range(4): a(f"ds_read_b64 {vr(KF+2*k,2)}, v{vK[k]}")
    a("s_waitcnt lgkmcnt(0)")
    a("v_cmp_ne_u32 vcc, 1, v15")
    a("s_cbranch_vccnz F_XB")
    DEN = 140; NUM = 156; OO = 212
    for i in range(4): a(f"v_mfma_f32_16x16x32_bf16 {vr(DEN+4*i,4)}, {vr(ZF,4)}, {vr(PQF+4*i,4)}, {vr(EP,4)}")
    for i in range(4):
        for u in range(2):
            a(f"v_mfma_f32_16x16x32_bf16 {vr(NUM+8*i+4*u,4)}, {vr(KF+4*u,4)}, {vr(PQF+4*i,4)}, 0")
    a(f"ds_write_b32 v{vXD}, v{vONE}")
    wo_c(a, range(5, 10))
    for i in range(4): a(f"v_rcp_f32 v{DEN+4*i}, v{DEN+4*i}")
    for i in range(4):
        for r in range(8): a(f"v_mul_f32 v{NUM+8*i+r}, v{NUM+8*i+r}, v{DEN+4*i}")
        for r in range(4): a(f"v_cvt_pk_bf16_f32 v{OO+4*i+r}, v{NUM+8*i+2*r}, v{NUM+8*i+2*r+1}")
        a(f"buffer_store_dwordx4 {vr(OO+4*i,4)}, v1, {WS}, s52 offen sc1")
        if i < 3: a(f"s_add_u32 s52, s52, {OP}")
    T(a, 7)
    vO = [2, 3, 4, 5]
    AC2 = 16; WO = 48; OF = 80
    for i in range(32): a(f"v_mov_b32 v{AC2+i}, 0")
    a(f"v_add_u32 v6, {OP}, v1")
    a("s_mov_b32 s46, 0x11111111")
    a("s_mov_b32 s47, 0")
    a("s_mov_b32 s50, -1")
    a("s_mov_b32 s51, -1")
    a("s_mov_b32 s54, 0x76432105")
    a("s_mov_b32 s44, 0")
    def ldO(st, h4, rt, sreg):
        return ('ld', 'vm', f"buffer_load_dwordx4 {vr(OF+st*32+h4*8+rt*4,4)}, v{1 if rt == 0 else 6}, s[64:67], s{sreg} offen offset:{h4*1024} sc1", f"O{st}.{h4}.{rt}")
    def ldWo(hp, h4):
        return [('ld', 'lgkm', f"ds_read_b64_tr_b16 {vr(WO+hp*16+ct*4+jh*2,2)}, v{vO[ct]} offset:{(h4*32+16*jh)*128}", f"Wo{hp}.{ct}.{jh}") for ct in range(4) for jh in range(2)]
    def pick(st):
        return ["s_and_b32 s45, s46, s47", f"s_cselect_b32 s66, s38, 0", f"s_ff1_i32_b32 s{50+st}, s45", f"s_bitset0_b32 s46, s{50+st}",
                f"s_lshl_b32 s{52+st}, s{50+st}, 10", f"s_add_u32 s{52+st}, s{52+st}, s55"]
    def setvO(st):
        return [f"s_lshr_b32 s48, s54, s{50+st}", "s_and_b32 s48, s48, 15", "s_lshl_b32 s48, s48, 14"], \
               [f"v_add_u32 v{vO[0]}, s48, v{vO0}"] + [f"v_xor_b32 v{vO[ct]}, {ct*32}, v{vO[0]}" for ct in range(1, 4)]
    pro = [ldO(st, h4, rt, 52+st) for st in range(2) for h4 in range(4) for rt in range(2)] + ldWo(0, 0)
    body = []
    for st in range(2):
        body.append(('i', f"@EMP{st}"))
        body.append(('use', f"@CHK{st}", [f"O{st}.{h4}.{rt}" for h4 in range(4) for rt in range(2)]))
        for h4 in range(4):
            hp = h4 & 1
            pend = []
            if h4 == 3: pend += [('i', x) for x in setvO(st ^ 1)[1]]
            pend += ldWo(hp ^ 1, (h4 + 1) & 3)
            if h4 == 0: pend += [('i', x) for x in pick(st)]
            if h4 == 2: pend += [('i', x) for x in setvO(st ^ 1)[0]]
            if h4 >= 1: pend += [ldO(st, h4-1, 0, 52+st), ldO(st, h4-1, 1, 52+st)]
            for ct in range(4):
                for rt in range(2):
                    d = AC2 + (rt*4+ct)*4
                    tg = [f"Wo{hp}.{ct}.0", f"Wo{hp}.{ct}.1"]
                    if ct in (0, 2) and rt == 0: tg += [f"Wo{hp}.{ct+1}.0", f"Wo{hp}.{ct+1}.1"]
                    body.append(('use', f"v_mfma_f32_16x16x32_bf16 {vr(d,4)}, {vr(WO+hp*16+ct*4,4)}, {vr(OF+st*32+h4*8+rt*4,4)}, {vr(d,4)}", tg))
                    for _ in range(2):
                        if pend: body.append(pend.pop(0))
            body += pend
        body += [ldO(st, 3, 0, 52+st), ldO(st, 3, 1, 52+st)]
    lines = insert_waits([(it[1], it[3]) for it in pro], body)
    a("s_mov_b32 s58, 0")
    a("s_waitcnt vmcnt(4)")
    a(f"ds_write_b32 v{vXD}, v{vONE} offset:{L_EC - L_XD}")
    if opt.get("g2wait") and G.stamp:
        a.label("F_DBGW")
        a("s_memrealtime s[40:41]")
        a("s_waitcnt lgkmcnt(0)")
        a("s_sub_u32 s40, s40, s70")
        a(f"s_cmp_lt_u32 s40, {opt['g2wait']}")
        a("s_cbranch_scc1 F_DBGW")
        T(a, 5)
    a(".p2align 6")
    a.label("F_GLOOP")
    for l in lines:
        if l.startswith("@EMP"):
            st = int(l[4:])
            a(f"s_cmp_lt_i32 s{50+st}, 0")
            a(f"s_cbranch_scc1 F_GE{st}")
        elif l.startswith("@CHK"):
            st = int(l[4:]); b = OF + st*32
            a.label(f"F_GC{st}")
            a(f"v_max3_u32 v15, v{b}, v{b+4}, v{b+8}")
            a(f"v_max3_u32 v7, v{b+12}, v{b+16}, v{b+20}")
            a(f"v_max3_u32 v15, v15, v{b+24}, v{b+28}")
            a("v_max_u32 v15, v15, v7")
            a("v_cmp_eq_u32 vcc, -1, v15")
            a(f"s_cbranch_vccnz F_GF{st}")
            a.label(f"F_GK{st}")
        else: a(l)
    a("s_add_u32 s44, s44, 1")
    a("s_cmp_lt_u32 s44, 4")
    a("s_cbranch_scc1 F_GLOOP")
    T(a, 10)
    P = 48
    a("s_add_u32 s57, s56, 65536")
    a("s_waitcnt lgkmcnt(0)")
    for rt in range(2):
        for cp in range(2):
            b = P + (rt*2+cp)*4
            for k in range(2):
                s = AC2 + (rt*4+cp*2+k)*4
                a(f"v_cvt_pk_bf16_f32 v{b+2*k}, v{s}, v{s+1}")
                a(f"v_cvt_pk_bf16_f32 v{b+2*k+1}, v{s+2}, v{s+3}")
    for rt in range(2):
        for cp in range(2):
            b = P + (rt*2+cp)*4
            a(f"v_permlane16_swap_b32 v{b}, v{b+2}")
            a(f"v_permlane16_swap_b32 v{b+1}, v{b+3}")
            a(f"buffer_store_dwordx4 {vr(b,4)}, v{vOUT}, s[60:63], s{56+rt} offen offset:{cp*64}{OUTF}")
    stamp_out(a)
    a("s_endpgm")
    gen_C_tail(a, vGD, vONE, vCV)
    for st in range(2):
        a.label(f"F_GF{st}")
        a("s_add_u32 s58, s58, 1")
        a(f"s_cmp_gt_u32 s58, {SPIN_MAX}")
        a(f"s_cbranch_scc1 F_GK{st}")
        for h4 in range(4):
            for rt in range(2): a(ldO(st, h4, rt, 52+st)[2].replace("s[64:67]", WS))
        a("s_waitcnt vmcnt(0)")
        a(f"s_branch F_GC{st}")
        a.label(f"F_GS{st}")
        a(f"s_sleep {opt.get('sl3', 4)}")
        a.label(f"F_GE{st}")
        a(f"buffer_load_dword v15, v{vPR}, {WS}, s55 offen offset:1008 sc1")
        a("s_add_u32 s58, s58, 1")
        a("s_waitcnt vmcnt(0)")
        a("ds_read_b32 v7, v211")
        a("v_cmp_eq_u32 vcc, -1, v15")
        a("s_waitcnt lgkmcnt(0)")
        a("v_cmp_ne_u32 s[40:41], 1, v7")
        a("s_or_b32 s45, s40, s41")
        a("s_or_b32 s45, s45, vcc_lo")
        a("s_lshr_b32 s40, s45, 1")
        a("s_or_b32 s45, s45, s40")
        a("s_lshr_b32 s40, s45, 2")
        a("s_or_b32 s45, s45, s40")
        a(f"s_cmp_gt_u32 s58, {SPIN_MAX}")
        a("s_cselect_b32 s45, 0, s45")
        a("s_andn2_b32 s47, s46, s45")
        a(f"s_cbranch_scc0 F_GS{st}")
        if st == 0: T(a, 9)
        else: T(a, 8)
        for x in pick(st): a(x)
        for h4 in range(4):
            for rt in range(2): a(ldO(st, h4, rt, 52+st)[2].replace("s[64:67]", WS))
        for x in setvO(st)[0] + setvO(st)[1]: a(x)
        for it in ldWo(0, 0): a(it[2])
        a(f"s_cmp_lt_i32 s{50+(st^1)}, 0")
        a(f"s_cbranch_scc0 F_GN{st}")
        for x in pick(st ^ 1): a(x)
        for h4 in range(4):
            for rt in range(2): a(ldO(st ^ 1, h4, rt, 52+(st^1))[2])
        a("s_waitcnt vmcnt(8)")
        a(f"s_branch F_GC{st}")
        a.label(f"F_GN{st}")
        a("s_waitcnt vmcnt(0)")
        a(f"s_branch F_GC{st}")

def kv_issue(a, KL, opt):
    a("s_lshl_b32 s59, s30, 12")
    for p in range(16):
        if p % 2 == 0:
            a("s_and_b32 s59, s59, 0x7fff")
            a("s_add_u32 s40, s59, s53")
        a(f"buffer_load_dwordx4 {vr(KL+4*p,4)}, v1, {WS}, s40 offen offset:{(p&1)*2048} sc1")
        if p & 1 and p < 15: a("s_add_u32 s59, s59, 4096")

def wo_c(a, ks):
    for k in ks:
        a(f"s_add_u32 m0, s68, {5*8192 + k*4096}")
        a(f"s_add_u32 s40, s69, {(7*64 + k*32)*2048}")
        a("buffer_load_dwordx4 v205, s[4:7], s40 offen lds")

def gen_C_tail(a, vGD, vONE, vCV):
    a.label("F_CNB0")
    a(f"ds_write_b32 v{vGD}, v{vONE} offset:{L_G14 - L_GD}")
    lds_wait(a, "F_WS15", vCV, 15, sleep=0, off=L_S15 - L_M)
    a("s_branch F_CB0")
    a.label("F_CNB1")
    a(f"ds_write_b32 v{vGD}, v{vONE}")
    a("s_branch F_CB1")

def merge(groups, tail, extras):
    out = []; ex = list(extras)
    nd = sum(1 for g in groups for it in g if it[0] == 'ld')
    per = -(-len(ex) // max(nd, 1))
    def plain(e): return isinstance(e, tuple)
    for g in groups:
        for k, it in enumerate(g):
            out.append(it)
            last = (k == len(g) - 1)
            if it[0] == 'ld':
                for _ in range(per):
                    if ex and (plain(ex[0]) or last):
                        e = ex.pop(0)
                        if isinstance(e, list): out += e
                        else: out.append(e)
    out += tail
    for e in ex:
        if isinstance(e, list): out += e
        else: out.append(e)
    return out

def I(s): return ('i', s)
def mksrd(b, size):
    return [I(f"s_mov_b32 s40, s{b}"), I(f"s_mov_b32 s41, s{b+1}"), I(f"s_mov_b32 s42, {hex(size)}"), I("s_mov_b32 s43, 0x00020000")]

def gen_L(a, opt):
    NT = " nt" if opt.get("nt", 1) else ""
    a("s_sub_u32 s34, s3, 4")
    a("v_lshrrev_b32 v2, 3, v0")
    a("v_and_b32 v4, 7, v0")
    if opt.get("xall", 0):
        a("v_and_b32 v8, 31, v0")
        a("v_lshlrev_b32 v8, 7, v8")
    else:
        a("v_lshlrev_b32 v8, 11, v4")
    a("v_min_u32 v9, 11, v0")
    a("v_lshlrev_b32 v9, 7, v9")
    a("s_lshl_b32 s40, s2, 14")
    a("s_lshl_b32 s41, s34, 12" if opt.get("xall", 0) else "s_lshl_b32 s41, s34, 7")
    a("s_add_u32 s42, s40, s41")
    a("s_mul_i32 s43, s2, 6144")
    a("s_mul_i32 s41, s34, 1536")
    a("s_add_u32 s43, s43, s41")
    a(f"s_mov_b32 s46, {hex(4 << 20)}")
    a("s_mov_b32 s47, 0x00020000")
    a(f"s_mov_b32 s50, {hex(6 << 20)}")
    a("s_mov_b32 s51, 0x00020000")
    a("s_lshl_b32 s40, s34, 3")
    a("v_add_u32 v3, s40, v2")
    a("v_lshrrev_b32 v5, 4, v0")
    a("s_and_b32 s40, s34, 1")
    a("s_lshl_b32 s41, s40, 2")
    a("v_add_u32 v6, s41, v5")
    a("v_xor_b32 v6, v6, v4")
    a("v_lshlrev_b32 v6, 4, v6")
    a("v_lshl_add_u32 v10, v3, 11, v6")
    a("v_and_b32 v6, 1, v5")
    a("v_lshlrev_b32 v6, 1, v6")
    a("v_or_b32 v6, s41, v6")
    a("v_xor_b32 v6, v6, v4")
    a("v_lshlrev_b32 v6, 4, v6")
    a("v_mul_u32_u24 v11, 6144, v3")
    a("v_add_u32 v11, v11, v6")
    a("s_lshl_b32 s52, s30, 18")
    for jj in range(1, 4): a(f"s_add_u32 s{52+jj}, s52, {jj*65536 - jj*1024}")
    a("s_lshl_b32 s56, s31, 7")
    Bp = [(0,0),(1,0),(2,0),(0,1),(1,1),(2,1)]
    for k, (seg, half) in enumerate(Bp):
        if k: a(f"s_add_u32 s{56+k}, s56, {seg*2048 + half*32*6144 - (k%4)*1024}")
    a(f"s_mul_i32 s62, s34, {WSEG}")
    a("s_mov_b32 s63, 393216")
    a("s_waitcnt lgkmcnt(0)")
    T(a, 9)
    a("s_mov_b64 s[44:45], s[4:5]")
    a("s_mov_b64 s[48:49], s[6:7]")
    if opt.get("pf0", 1):
        a("buffer_load_dword v250, v9, s[48:51], s43 offen")
        a("buffer_load_dword v250, v8, s[44:47], s42 offen")
    def stage(t):
        base = ((t + 1) % 3) * STAGE
        n = [0]
        def d(v, s, so, off):
            n[0] += 1
            return ('ld', 'vm', f"buffer_load_dwordx4 v{v}, {s}, s{so} offen offset:{off} lds", f"S{t}.{n[0]-1}")
        g1 = [I(f"s_add_u32 m0, s62, {base + 4096}")] + [d(11, "s[48:51]", 56+k, k*1024) for k in (1, 2, 0, 3)]
        g0 = [I(f"s_add_u32 m0, s62, {base}")] + [d(10, "s[44:47]", 52+jj, jj*1024) for jj in range(4)]
        g2 = [I(f"s_add_u32 m0, s62, {base + 8192}")] + [d(11, "s[48:51]", 56+k, (k-4)*1024) for k in (4, 5)]
        return [g1, g0, g2], [I("v_add_u32 v10, 128, v10"), I("v_add_u32 v11, s63, v11")]
    def tags(t): return [f"S{t}.{n}" for n in range(10)]
    pro = merge(*stage(0), []) + merge(*stage(1), [])
    for it in pro: a(it[1] if it[0] == 'i' else it[2])
    T(a, 8)
    common2(a)
    prolist = [(it[1], it[3]) for it in pro if it[0] == 'ld']
    a("v_lshlrev_b32 v6, 1, v5")
    a("v_xor_b32 v6, v6, v4")
    a("v_lshlrev_b32 v6, 4, v6")
    a("v_lshl_add_u32 v12, v2, 11, v6")
    a("v_mov_b32 v13, 0")
    a("s_lshl_b32 s35, s2, 2")
    a("s_add_u32 s35, s35, s34")
    a("s_bfe_u32 s98, s2, 0x20003")
    a("s_mov_b32 s96, s98")
    a("s_waitcnt lgkmcnt(0)")
    srd(a, 36, 26, WS_SIZE)
    srd(a, 64, 24, 256)

    ex = {t: [] for t in range(-2, 17)}
    bdep = {t: [] for t in range(0, 17)}
    ex[-2].append([I("s_add_u32 s40, s2, s34"), I("s_cmp_lg_u32 s40, 0"), I("s_cbranch_scc1 F_NOTOK"),
                   I("s_memrealtime s[100:101]"), I("s_waitcnt lgkmcnt(0)"), I("s_or_b32 s100, s100, 1"), I("v_mov_b32 v14, s100"),
                   I("s_mov_b64 exec, 1"), I("buffer_store_dword v14, v13, s[64:67], 0 offen sc1"), I("s_mov_b64 exec, -1"), I("F_NOTOK:")])
    tT = opt.get("tT", 2)
    ex[tT].append(('ld', 'vm', "buffer_load_dword v14, v13, s[64:67], 0 offen sc1", "TOK"))
    ex[tT+2].append([('use', "v_readfirstlane_b32 s68, v14", ["TOK"]), I("s_mov_b32 s69, 0"),
         I("F_TK:"), I("s_cmp_lg_u32 s68, 0"), I("s_cbranch_scc1 F_TKX"),
         I("buffer_load_dword v14, v13, s[64:67], 0 offen sc1"), I("s_waitcnt vmcnt(0)"), I("v_readfirstlane_b32 s68, v14"),
         I("s_add_u32 s69, s69, 1"), I(f"s_cmp_lt_u32 s69, {SPIN_MAX}"), I("s_cbranch_scc1 F_TK"), I("F_TKX:")])
    if opt.get("pf", 1):
        ex[-2] += [I("s_lshr_b32 s99, s2, 5"), I("s_lshl_b32 s99, s99, 3"), I("s_or_b32 s99, s99, s28"),
              I("s_mul_i32 s100, s98, 3"), I("s_add_u32 s100, s100, 4"),
              I("s_add_u32 s69, s100, s34"), I("s_lshl_b32 s69, s69, 7"), I("s_lshl_b32 s101, s99, 16"), I("s_add_u32 s101, s101, s69"),
              I("s_lshl_b32 s100, s100, 6"), I("s_mul_i32 s69, s99, 3"), I("s_add_u32 s100, s100, s69"), I("s_add_u32 s100, s100, s34"), I("s_mul_i32 s100, s100, 6144"),
              I("v_and_b32 v16, 31, v0"), I("v_lshlrev_b32 v16, 11, v16"),
              I("v_min_u32 v17, 47, v0"), I("v_lshlrev_b32 v17, 7, v17"), I("v_lshlrev_b32 v18, 7, v0"), I("s_lshl_b32 s99, s2, 13")]
        for sg, t in enumerate(opt.get("pft", (-2, 0, 3, 6))):
            ex[t].append([I(f"s_cmp_lg_u32 s98, {sg}"), I(f"s_cbranch_scc1 F_PF{sg}X"), I("s_cmp_eq_u32 s34, 3"), I(f"s_cbranch_scc1 F_PF{sg}W"),
                          I("buffer_load_dword v250, v17, s[48:51], s100 offen"), I("s_nop 0" if opt.get("xall", 0) else "buffer_load_dword v250, v16, s[44:47], s101 offen"), I(f"s_branch F_PF{sg}X"),
                          I(f"F_PF{sg}W:")] + mksrd(8, 2 << 20) + [I("buffer_load_dword v250, v18, s[40:43], s99 offen"), I(f"F_PF{sg}X:")])
    tC = opt.get("tC", 4); chunk = opt.get("chunk", 52)
    W8 = 32; WF = 36; KF = 44; VFp = 64; U = 80; UN = 96
    ex[-2] += [I("s_lshl_b32 s40, s34, 1"), I("v_xor_b32 v20, s40, v4"), I("v_lshlrev_b32 v20, 4, v20"), I("v_lshl_add_u32 v20, v2, 11, v20"),
               I("s_lshr_b32 s40, s2, 4"), I("s_lshl_b32 s40, s40, 18"), I("s_and_b32 s41, s2, 15"), I("s_lshl_b32 s41, s41, 7"), I("s_add_u32 s40, s40, s41"),
               I("v_xor_b32 v21, 6, v4"), I("v_lshlrev_b32 v21, 4, v21"), I("v_lshl_add_u32 v21, v2, 11, v21"), I("v_add_u32 v21, s40, v21"), I("v_subrev_u32 v21, 6144, v21"),
               I("s_lshl_b32 s41, s34, 15"), I("s_add_u32 s40, s40, s41"), I("v_add_u32 v20, s40, v20"),
               I("v_and_b32 v22, 3, v2"), I("v_xor_b32 v22, s34, v22"), I("v_lshlrev_b32 v22, 5, v22"), I("v_lshl_add_u32 v22, v4, 2, v22"), I("v_lshl_add_u32 v22, v2, 11, v22"), I(f"v_add_u32 v22, {L_K}, v22"),
               I("v_add_u32 v23, 3, v2"), I("v_and_b32 v23, 3, v23"), I("v_xor_b32 v23, s34, v23"), I("v_lshlrev_b32 v23, 5, v23"), I("v_lshl_add_u32 v23, v4, 2, v23"), I("v_lshl_add_u32 v23, v2, 11, v23"), I(f"v_add_u32 v23, {L_K - 384}, v23"),
               I("s_and_b32 s40, s2, 15"), I("s_lshl_b32 s40, s40, 6"), I("s_lshl_b32 s41, s34, 4"), I("s_add_u32 s40, s40, s41"),
               I("v_lshlrev_b32 v24, 1, v4"), I("v_add_u32 v24, s40, v24"),
               I(f"v_mul_u32_u24 v25, {CP}, v24"), I("v_lshlrev_b32 v24, 3, v24"),
               I("s_lshr_b32 s40, s2, 4"), I("s_lshl_b32 s40, s40, 3"), I("v_add_u32 v26, s40, v2"), I("v_lshl_add_u32 v25, v26, 4, v25")]
    ex[-2] += [I(f"v_mov_b32 v{r}, 0") for r in range(KF, U)]
    tmp = Asm(); handoff_addrs_L(tmp)
    ex[-2] += [I(l) for l in tmp.lines] + [I(f"v_mov_b32 v{112+i}, -1") for i in range(4)] + [I("v_lshlrev_b32 v27, 4, v5"), I("s_mov_b32 s7, 0xffff0000")]
    for sg, t in enumerate(opt.get("kvt", (1, 1, -1, 0))):
        g = [I(f"s_cmp_lg_u32 s98, {sg}"), I(f"s_cbranch_scc1 F_KV{sg}X"), I("s_lshl_b32 s69, s34, 11")]
        for which, (ptr, lb) in enumerate(((12, L_K), (14, L_V))):
            g += mksrd(ptr, 4 << 20)
            if which == 0:
                g += [I(f"s_mov_b32 m0, {L_KH}"), I("s_mov_b64 exec, 0xffffff"), I(f"buffer_load_dwordx4 v21, s[40:43], 0 offen{NT} lds"), I("s_mov_b64 exec, -1")]
            for hf in range(2):
                g += [I(f"s_add_u32 m0, s69, {lb + hf*8192}"), I(f"s_mov_b32 s97, {hf*131072}"),
                      I(f"buffer_load_dwordx4 v20, s[40:43], s97 offen{NT} lds"), I(f"s_mov_b32 s97, {hf*131072 + 16384 - 1024}"),
                      I(f"buffer_load_dwordx4 v20, s[40:43], s97 offen offset:1024{NT} lds")]
        g += mksrd(16, 8192) + [I(f"buffer_load_dwordx4 {vr(W8,4)}, v24, s[40:43], 0 offen"), I(f"F_KV{sg}X:")]
        ex[t] += [[]]*2 + [g]
        assert t + 3 <= tC
    L = []
    for cc in range(2):
        rd = [('ld', 'lgkm', f"ds_read_u16_d16_hi v{KF+r}, v{23 if r < 3 else 22} offset:{(r if r < 3 else r-3)*128 + cc*2}", f"k{r}") for r in range(19)]
        rv = [('ld', 'lgkm', f"ds_read_u16_d16_hi v{VFp+r}, v22 offset:{16384 + r*128 + cc*2}", f"v{r}") for r in range(16)]
        L += rd[:12]
        for j in range(4):
            src = W8 + 2*cc + (j >> 1)
            L.append(I(f"v_and_b32 v{WF+j}, s7, v{src}" if j & 1 else f"v_lshlrev_b32 v{WF+j}, 16, v{src}"))
        rest = rd[12:] + rv
        for s in range(16):
            L.append(('use', f"v_mul_f32 v{U+s}, v{WF+3}, v{KF+s}", [f"k{min(s+7, 18)}" if s % 8 == 0 else f"k{s}"]))
            if rest: L.append(rest.pop(0))
        for j in (2, 1, 0):
            for s in range(16):
                L.append(('use', f"v_fmac_f32 v{U+s}, v{WF+j}, v{KF+s+3-j}", ["k18"]))
                if rest: L.append(rest.pop(0))
        for s in range(16): L.append(('use', f"v_mul_f32 v{U+s}, v{U+s}, v{VFp+s}", ["v15"]))
        for rho in range(2):
            for i, (lo, hi) in enumerate(((12, 8), (4, 0), (14, 10), (6, 2))):
                L.append(I(f"v_cvt_pk_bf16_f32 v{UN+8*cc+4*rho+i}, v{U+lo+rho}, v{U+hi+rho}"))
    g = []
    for cc in range(2):
        g.append(I(f"s_mov_b32 s69, {hex(WS_UT + cc*CP)}"))
        for rho in range(2):
            g.append(('ld', 'vm', f"buffer_store_dwordx4 {vr(UN+8*cc+4*rho,4)}, v25, {WS}, s69 offen offset:{rho*2048} sc1", f"us{cc}.{rho}"))
    L.append(g)
    def cond(name, times, items):
        for sg, t in enumerate(times):
            ex[t] += [[]]*2 + [[I(f"s_cmp_lg_u32 s96, {sg}"), I(f"s_cbranch_scc1 F_{name}{sg}X")] + [I(x.replace("@", f"F_{name}{sg}X")) for x in items] + [I(f"F_{name}{sg}X:")]]
    clr = [f"buffer_store_dwordx4 v[112:115], v1, {WS}, s4 offen sc1", "s_mov_b32 exec_lo, 0x00010001", "s_mov_b32 exec_hi, 0x00010001",
           f"buffer_store_dwordx4 v[112:115], v27, {WS}, s5 offen sc1", "s_mov_b64 exec, -1"]
    for i in range(4):
        clr.append(f"buffer_store_dwordx4 v[112:115], v1, {WS}, s6 offen sc1")
        if i < 3: clr.append(f"s_add_u32 s6, s6, {OP}")
    cond("CL", opt.get("clt", (3, 5, 1, 2)), clr)
    ex[-2] += [I(x) for x in ["s_lshr_b32 s40, s2, 4", "s_lshl_b32 s40, s40, 4", "s_lshl_b32 s41, s34, 3", "s_add_u32 s40, s40, s41",
        "v_add_u32 v28, s40, v2", f"v_mul_u32_u24 v232, {8*CP}, v4", "v_lshl_add_u32 v232, v28, 4, v232", "v_lshrrev_b32 v29, 6, v28", "v_lshlrev_b32 v29, 9, v29",
        "v_and_b32 v30, 15, v28", "v_lshl_add_u32 v29, v30, 4, v29", "v_bfe_u32 v30, v28, 4, 2", "v_lshl_add_u32 v29, v30, 2, v29", "v_lshlrev_b32 v30, 4, v4",
        "v_lshl_add_u32 v234, v29, 11, v30", "v_lshl_add_u32 v233, v29, 12, v30"]]
    ql = ["s_cmp_ge_u32 s34, 2", "s_cbranch_scc1 @"] + [x[1] for x in mksrd(10, 4 << 20)] + ["s_and_b32 s69, s2, 15", "s_lshl_b32 s69, s69, 7"]
    for j in range(8):
        hf, r = j >> 2, j & 3
        ql.append(f"s_add_u32 s97, s69, {(r>>1)*4096 + hf*256*2048}")
        ql.append(f"buffer_load_dwordx4 {vr(QREG+4*j,4)}, v234, s[40:43], s97 offen offset:{(r&1)*2048}{NT}")
    cond("Q", opt.get("qt", (1, 1, -1, 0)), ql)
    t = tC
    for i in range(0, len(L), chunk):
        ex[t] += L[i:i+chunk]
        t += 1
    tLast = t - 1
    tB = tLast + 1 + opt.get("fad", 2)
    assert tB <= 13, tB
    bdep[tB] += ["us1.1"]
    assert max(opt.get("clt", (3, 5, 1, 2))) < tLast
    ex[tB-1] = [[I("s_cmp_lg_u32 s34, 0"), I("s_cbranch_scc1 F_NOFA"), I("s_lshl_b32 s69, s2, 2"), I(f"s_add_u32 s69, s69, {hex(WS_FA)}"), I("v_mov_b32 v14, s68"),
                 I("s_mov_b64 exec, 1"), I(f"buffer_store_dword v14, v13, {WS}, s69 offen sc1"), I("s_mov_b64 exec, -1"), I("F_NOFA:")]] + ex[tB-1]
    ht = opt.get("ht", (9, 10, 11, 12))
    assert min(ht) > tLast and min(ht) > max(opt.get("pft", (-2, 0, 3, 6)))
    ex[min(ht)] = [I("s_lshl_b32 s98, s35, 12"), I(f"s_mul_i32 s99, s34, {HSZ}"), I(f"s_add_u32 s99, s99, {L_H}")] + ex[min(ht)]
    hd = [x[1] for x in mksrd(18, 4 << 20)]
    for j in range(4):
        hd += ["s_add_u32 m0, s99, 32", f"buffer_load_dwordx4 v1, s[40:43], s98 offen offset:{j*1024} lds",
               f"s_add_u32 m0, s99, {H1+36}", f"buffer_load_dwordx4 v1, s[40:43], s98 offen offset:{j*1024} lds"]
    cond("H", ht, hd)
    ex[13] += [I(f"s_mov_b32 s69, {hex(WS_FA)}"), ('ld', 'vm', f"buffer_load_dwordx4 v[16:19], v1, {WS}, s69 offen sc1", "FA"),
               I("s_lshl_b32 s97, s34, 2"), I(f"s_add_u32 s97, s97, {L_S15}"), I("v_mov_b32 v28, s97"), I("v_mov_b32 v29, 1"), ('use', "ds_write_b32 v28, v29", tags(15))]
    body = merge([], [], ex[-2]) + [('use', "s_barrier", tags(0))] + merge(*stage(2), ex[-1])
    for t in range(14):
        body.append(('use', "s_barrier", tags(t+1) + bdep[t+1]))
        if t + 3 <= 15: body += merge(*stage(t+3), ex[t])
        else: body += merge([], [], ex[t])
    lines = insert_waits(prolist, body, loop=False)
    nb = 0
    for l in lines:
        if l == "s_barrier" and G.stamp:
            a("s_memrealtime s[72:73]"); a("s_waitcnt lgkmcnt(0)"); a(f"v_writelane_b32 v240, s72, {nb}")
            a(l)
            a("s_memrealtime s[72:73]"); a("s_waitcnt lgkmcnt(0)"); a(f"v_writelane_b32 v240, s72, {32+nb}")
            nb += 1
        else:
            a(l)
    if opt.get("g1only"):
        stamp_out(a); a("s_endpgm"); return
    gen_conv(a, opt)

def handoff_addrs_L(a):
    t = Asm(); handoff_addrs(t, 34, 4)
    import re
    for l in t.lines: a(re.sub(r"\bs8\b", "s69", l))

def gen_conv(a, opt):
    NT = " nt" if opt.get("nt", 1) else ""
    T(a, 1)
    a(f"s_mul_i32 s52, s34, {USZ}")
    a(f"s_add_u32 s52, s52, {L_U}")
    a(f"s_mul_i32 s63, s35, {CP}")
    a(f"s_add_u32 s53, s63, {hex(WS_UT)}")
    a("s_add_u32 s54, s18, s98")
    a("s_addc_u32 s55, s19, 0")
    a("s_load_dword s56, s[54:55], 0")
    a("s_lshl_b32 s57, s35, 1")
    a("s_and_b32 s57, s57, 0xfffffffc")
    a("s_add_u32 s54, s20, s57")
    a("s_addc_u32 s55, s21, 0")
    a("s_load_dword s57, s[54:55], 0")
    srd(a, 40, 8, 2 << 20)
    a("s_lshl_b32 s62, s34, 10")
    a("s_lshl_b32 s100, s34, 14")
    a("s_lshl_b32 s101, s33, 7")
    a("s_add_u32 s100, s100, s101")
    def woc(chs):
        for c in chs:
            for hf in range(2):
                a(f"s_add_u32 m0, s62, {c*8192 + hf*4096}")
                a(f"s_add_u32 s101, s100, {(((c+2)%12)*64 + hf*32)*2048}")
                a("buffer_load_dwordx4 v12, s[40:43], s101 offen lds")
    chk = ["v_xor_b32 v16, s68, v16", "v_xor_b32 v17, s68, v17", "v_xor_b32 v18, s68, v18", "v_xor_b32 v19, s68, v19",
          "v_or3_b32 v16, v16, v17, v18", "v_or_b32 v16, v16, v19", "v_cmp_ne_u32 vcc, 0, v16"]
    woc((10, 11))
    a("s_waitcnt vmcnt(4)")
    for c in chk: a(c)
    a("s_cbranch_vccz F_P1_X")
    spin(a, "F_P1", [f"buffer_load_dwordx4 v[16:19], v1, {WS}, s69 offen sc1"], chk, 101, sleep=16)
    T(a, 5)
    a("s_add_u32 m0, s52, 256")
    for j in range(2): a(f"buffer_load_dwordx4 v1, {WS}, s53 offen offset:{j*1024} sc1 lds")
    a(f"s_add_u32 m0, s52, {URHO+256-2048}")
    a(f"ds_write_b32 v28, v29 offset:{L_GO2S}")
    for j in range(2, 4): a(f"buffer_load_dwordx4 v1, {WS}, s53 offen offset:{j*1024} sc1 lds")
    a("v_and_b32 v30, 3, v0")
    a("v_lshlrev_b32 v30, 2, v30")
    a(f"v_add_u32 v30, {L_M}, v30")
    lds_wait(a, "F_WG14", 30, 11, off=L_G14 - L_M)
    woc(range(0, 5))
    a("v_add_u32 v16, s52, v1")
    a(f"v_add_u32 v17, {URHO-256}, v16")
    a("v_cmp_gt_u32 vcc, 16, v0")
    a("v_and_b32 v18, 1, v0")
    a("v_lshlrev_b32 v18, 4, v18")
    a("v_cndmask_b32 v16, v17, v16, vcc")
    a("v_bfe_u32 v19, v0, 1, 1")
    a(f"v_mul_u32_u24 v19, {H1}, v19")
    a("v_cmp_gt_u32 vcc, 32, v0")
    a("v_add3_u32 v18, v18, v19, s99")
    for i in range(4): a(f"v_mov_b32 v{20+i}, 0")
    a("v_cndmask_b32 v16, v18, v16, vcc")
    a("v_mov_b32 v5, s99")
    a("ds_write_b128 v16, v[20:23]")
    a(f"ds_write_b32 v5, v20 offset:{H1+32}")
    vA, vB = 6, 7
    a("v_and_b32 v16, 3, v0")
    a("v_bfe_u32 v17, v0, 2, 2")
    a("v_add_u32 v16, v16, v17")
    a("v_lshlrev_b32 v16, 3, v16")
    a("v_lshrrev_b32 v17, 4, v0")
    a("v_lshl_add_u32 v16, v17, 5, v16")
    a("s_add_u32 s58, s99, 8")
    a(f"v_add_u32 v{vA}, s58, v16")
    a("v_and_b32 v16, 15, v0")
    a("v_sub_u32 v16, v16, v17")
    a("v_lshlrev_b32 v16, 4, v16")
    a(f"s_add_u32 s58, s52, {256-64}")
    a(f"v_add_u32 v{vB}, s58, v16")
    AF = 16; BF = 48; ACC = 96
    for i in range(64): a(f"v_mov_b32 v{ACC+i}, 0")
    a("v_subrev_u32 v8, 16, v0")
    a("v_add_u32 v9, 47, v0")
    a("v_cmp_gt_u32 vcc, 16, v0")
    a("v_cmp_eq_u32 s[60:61], 0, v0")
    a("v_mov_b32 v10, 63")
    a("v_cndmask_b32 v8, v8, v9, vcc")
    a("v_cndmask_b32 v8, v8, v10, s[60:61]")
    a("v_lshlrev_b32 v8, 2, v8")
    a("s_waitcnt lgkmcnt(0)")
    a("s_lshl_b32 s56, s56, 16")
    a("s_bitcmp1_b32 s35, 0")
    a("s_cselect_b32 s58, 0, 16")
    a("s_lshl_b32 s57, s57, s58")
    a("s_and_b32 s57, s57, 0xffff0000")
    a("v_mov_b32 v9, s56")
    a("v_add_f32 v9, s57, v9")
    a("v_cvt_pk_bf16_f32 v9, v9, v9")
    a("ds_write_b16 v5, v9 offset:32")
    a(f"ds_write_b16 v5, v9 offset:{H1+36}")
    a("s_lshl_b32 s58, s34, 2")
    a(f"s_add_u32 s58, s58, {L_CV}")
    a("v_mov_b32 v9, s58")
    a("v_mov_b32 v10, 1")
    a("s_waitcnt vmcnt(10)")
    T(a, 2)
    def ldA(nu, nxt):
        return [('ld', 'lgkm', f"ds_read_b64_tr_b16 {vr(AF+4*nu+2*jh,2)}, v{vA} offset:{jh*H1 + nu*512 + 128*nxt}", f"A{nu}.{jh}") for jh in range(2)]
    def bslot(rho, x): return 8 if (rho == 1 and x == 0) else x
    def ldB(rho, x, nxt):
        s = bslot(rho, x)
        return [('ld', 'lgkm', f"ds_read_b128 {vr(BF+4*s,4)}, v{vB} offset:{rho*URHO + x*256 + 64*(1-nxt)}", f"B{s}")]
    def mf(rho, nu, x):
        d = ACC + 32*rho + 4*(nu + x); s = bslot(rho, x)
        return ('use', f"v_mfma_f32_16x16x32_bf16 {vr(d,4)}, {vr(AF+4*nu,4)}, {vr(BF+4*s,4)}, {vr(d,4)}", [f"A{nu}.0", f"A{nu}.1", f"B{s}"])
    pro = []
    for k in range(8): pro += ldB(0, 7-k, 0) + ldA(k, 0)
    for it in pro: a(it[2])
    body = []; pend = []; cnt = [0]
    def emit(m, after):
        body.append(m); pend.extend(after); cnt[0] += 1
        for _ in range(2):
            if pend: body.append(pend.pop(0))
    first = True
    for x in range(7, -1, -1):
        for nu in range(0, 8 - x):
            after = []
            if first: after += ldB(1, 0, 0); first = False
            if nu == 7 - x and x >= 1: after += ldB(1, x, 0)
            emit(mf(0, nu, x), after)
    first = True
    for nu in range(8):
        for x in range(7 - nu, -1, -1):
            after = []
            if first: after += ldB(0, 0, 1); first = False
            if x == 7 - nu and x >= 1: after += ldB(0, x, 1)
            if x == 0: after += ldA(nu, 1)
            emit(mf(1, nu, x), after)
    while pend: body.append(pend.pop(0))
    lines = insert_waits([(it[1], it[3]) for it in pro], body)
    a("s_mov_b32 s58, 0")
    a(".p2align 6")
    a.label("F_VLOOP")
    for l in lines: a(l)
    a("s_waitcnt vmcnt(0)")
    a(f"ds_write_b32 v9, v10 offset:{L_EW - L_CV}")
    a(f"v_add_u32 v{vA}, 128, v{vA}")
    a(f"v_subrev_u32 v{vB}, 64, v{vB}")
    a("s_add_u32 s58, s58, 1")
    a("s_cmp_lt_u32 s58, 4")
    a("s_cbranch_scc1 F_VLOOP")
    T(a, 3)
    a("s_waitcnt lgkmcnt(0)")
    a("ds_write_b32 v9, v10")
    P = 16
    for i in range(8): a(f"ds_bpermute_b32 v{P+1+i}, v8, v{ACC+32+4*i+3}")
    a(f"v_mov_b32 v{P}, 0")
    for i in range(8):
        for r in range(1, 4): a(f"v_add_f32 v{ACC+4*i+r}, v{ACC+4*i+r}, v{ACC+32+4*i+r-1}")
    a("s_waitcnt lgkmcnt(0)")
    for i in range(8): a(f"v_cndmask_b32 v{P+12+i}, v{P+1+i}, v{P+i}, s[60:61]")
    for i in range(8): a(f"v_add_f32 v{ACC+4*i}, v{ACC+4*i}, v{P+12+i}")
    Y = 48
    for i in range(8):
        a(f"v_cvt_pk_bf16_f32 v{Y+2*i}, v{ACC+4*i}, v{ACC+4*i+1}")
        a(f"v_cvt_pk_bf16_f32 v{Y+2*i+1}, v{ACC+4*i+2}, v{ACC+4*i+3}")
    a(f"s_add_u32 s53, s63, {hex(WS_YT)}")
    for ip in range(4): a(f"buffer_store_dwordx4 {vr(Y+4*ip,4)}, v1, {WS}, s53 offen offset:{ip*1024} sc1")
    a("s_lshl_b32 s54, s2, 7")
    a("s_lshl_b32 s55, s34, 2")
    a("s_add_u32 s54, s54, s55")
    a(f"s_add_u32 s54, s54, {hex(WS_F4)}")
    a("v_mov_b32 v14, s68")
    a("s_cmp_ge_u32 s34, 2")
    a("s_cbranch_scc0 F_POST")
    a("v_and_b32 v9, 3, v0")
    a("v_lshlrev_b32 v9, 2, v9")
    a("v_and_b32 v11, 4, v0")
    a("v_lshl_add_u32 v9, v11, 3, v9")
    a(f"v_add_u32 v9, {L_CV}, v9")
    lds_wait(a, "F_WL", 9, 11)
    T(a, 4)
    a(f"s_add_u32 s62, s62, {98304 - 2048}")
    a(f"s_add_u32 s100, s100, {24*65536 - 32768}")
    for k in range(16):
        a(f"s_add_u32 m0, s62, {k*2048}")
        a(f"s_add_u32 s101, s100, {k*32768}")
        a("buffer_load_dwordx4 v12, s[40:43], s101 offen lds")
    a("s_waitcnt vmcnt(16)")
    a("s_mov_b64 exec, 1")
    a(f"buffer_store_dword v14, v13, {WS}, s54 offen sc1")
    a("s_mov_b64 exec, -1")
    a("s_lshl_b32 s58, s34, 2")
    a(f"s_add_u32 s58, s58, {L_CV + 8}")
    a("v_mov_b32 v9, s58")
    a("s_waitcnt vmcnt(1)")
    a("ds_write_b32 v9, v10")
    a("s_waitcnt lgkmcnt(0)")
    stamp_out(a)
    a("s_endpgm")
    a.label("F_POST")
    a("s_and_b32 s52, s2, 15")
    a("s_lshl_b32 s56, s52, 7")
    a("s_waitcnt vmcnt(0)")
    a("s_mov_b64 exec, 1")
    a(f"buffer_store_dword v14, v13, {WS}, s54 offen sc1")
    a("s_mov_b64 exec, -1")
    T(a, 4)
    a("s_lshl_b32 s53, s52, 11")
    a(f"s_add_u32 s53, s53, {hex(WS_F4)}")
    a("v_lshrrev_b32 v8, 2, v0")
    a("v_lshlrev_b32 v8, 7, v8")
    a("v_and_b32 v9, 3, v0")
    a("v_lshl_add_u32 v8, v9, 2, v8")
    spin(a, "F_P4", [f"buffer_load_dword v9, v8, {WS}, s53 offen sc1"], ["v_cmp_ne_u32 vcc, s68, v9"], 101, sleep=opt.get("sl4", 32))
    a(f"s_mul_i32 s54, s52, {64*CP}")
    a(f"s_add_u32 s54, s54, {hex(WS_YT)}")
    YY = 48; TT = 80; O = 100
    for c in range(8):
        a(f"buffer_load_dwordx4 {vr(YY+4*c,4)}, v232, {WS}, s54 offen sc1")
        if c < 7: a(f"s_add_u32 s54, s54, {CP}")
    T(a, 6)
    srd(a, 44, 22, 8 << 20)
    a("s_mov_b32 s55, 0xffff0000")
    a("s_add_u32 s56, s56, 2048")
    a("s_waitcnt vmcnt(0)")
    T(a, 7)
    for j in range(8):
        hf, r = j >> 2, j & 3
        for c in range(8):
            qs = QREG + 4*j + (c >> 1); ys = YY + 4*c + (j >> 1)
            a(f"v_and_b32 v{TT+c}, s55, v{qs}" if c & 1 else f"v_lshlrev_b32 v{TT+c}, 16, v{qs}")
            a(f"v_and_b32 v{TT+8+c}, s55, v{ys}" if j & 1 else f"v_lshlrev_b32 v{TT+8+c}, 16, v{ys}")
        for c in range(8): a(f"v_mul_f32 v{TT+c}, v{TT+c}, v{TT+8+c}")
        for m in range(4): a(f"v_cvt_pk_bf16_f32 v{O+4*j+m}, v{TT+2*m}, v{TT+2*m+1}")
        a(f"s_add_u32 s57, s56, {r*4096 + hf*256*4096}")
        a(f"buffer_store_dwordx4 {vr(O+4*j,4)}, v233, s[44:47], s57 offen{OUTF}")
    stamp_out(a)
    a("s_endpgm")

NAME = "concat_heads__linear_attn_block__ssm_conv_h3__prompt"
def build(path, stamp=False, opt=None, verbose=False):
    a = gen(stamp=stamp, opt=opt); a.fix_hazards(verbose=verbose)
    hdr = ["generated by tools/f3.py (hand-written generator): single persistent launch, 256 workgroups x 8 waves",
           "waves 0-3: qkv GEMM -> kv/z partials -> o -> out GEMM ; waves 4-7: LDS-DMA loaders, H3 pre-pass, Toeplitz long conv, gating"]
    txt = make_file(hdr, [(None, (256,1,1), (512,1,1), LDS_TOTAL)], [(NAME + "_kernel", a, {})])
    open(path, "w").write(txt)

def parse_opt(args):
    opt = {}
    for x in args:
        k, v = x.split("=")
        opt[k] = tuple(int(y) for y in v.split(",")) if "," in v else int(v)
    return opt

if __name__ == "__main__":
    import sys
    name = sys.argv[1] if len(sys.argv) > 1 else "f3"
    opt = parse_opt(sys.argv[2:])
    build(f"mb/{name}.s", opt=opt, verbose=(len(sys.argv) == 1))
    build(f"mb/{name}_stamp.s", stamp=True, opt=opt)
```

```python
from asmlib import *
import f3
from f3 import *
def tlbwarm():
    a = Asm()
    a("s_load_dwordx16 s[4:19], s[0:1], 0")
    a("s_load_dwordx8 s[20:27], s[0:1], 64")
    a("v_lshlrev_b32 v1, 16, v0")
    a("s_waitcnt lgkmcnt(0)")
    for b, size in ((4, 4), (6, 6), (8, 2), (10, 4), (12, 4), (14, 4), (18, 4), (22, 8), (26, 20)):
        srd(a, 40, b, size << 20)
        for k in range((size + 3) // 4):
            a(f"s_mov_b32 s44, {k << 22}")
            a("buffer_load_dword v2, v1, s[40:43], s44 offen")
    a("s_waitcnt vmcnt(0)")
    a("s_endpgm")
    return a
def codewarm():
    a = Asm()
    a("s_getpc_b64 s[4:5]")
    a("CW_PC:")
    a("s_sub_u32 s4, s4, CW_PC-main_kernel")
    a("s_subb_u32 s5, s5, 0")
    a("v_lshlrev_b32 v1, 7, v0")
    for k in range(3):
        a("global_load_dword v2, v1, s[4:5]")
        a("v_add_u32 v1, 8192, v1")
    a("s_waitcnt vmcnt(0)")
    a("s_endpgm")
    return a
def build(path, order):
    a1 = gen(opt={"outf": 2}); a1.fix_hazards(verbose=False)
    e = Asm(); e("s_endpgm")
    L = {"f": ("main_kernel", (256,1,1), (512,1,1), LDS_TOTAL), "e": ("e_kernel", (256,1,1), (64,1,1), 0), "t": ("t_kernel", (256,1,1), (64,1,1), 0), "c": ("c_kernel", (256,1,1), (64,1,1), 0)}
    txt = make_file(["variant"], [L[c] for c in order], [("main_kernel", a1, {}), ("e_kernel", e, {}), ("t_kernel", tlbwarm(), {}), ("c_kernel", codewarm(), {})])
    open(path, "w").write(txt)
for o in ("f", "ff", "ef", "tf", "cf", "fff"):
    build(f"v2_{o}.s", o)
```

```python
from asmlib import *
from sched import insert_waits

WS_KVP = 0
WS_ZP = 1 << 20
WS_FA = WS_ZP + 65536
WS_FC = WS_FA + 2048
WS_F4 = WS_FA + 4096
WS_CT = WS_ZP + 131072
CT_U, CT_P, CT_O, CT_Y = 0, 64, 128, 160
WS_O = 2 << 20
WS_UT = 7 << 20
WS_YT = 12 << 20
OP = 33 * 1024
CP = 4096 + 128
WS_ST = 20 << 20
WS_SIZE = 0x10000000
LOG2E = 0x3fb8aa3b
EPS = 0x358637bd
STAGE = 40960
WSEG = 10240
L_U = 98304; URHO = 2304; USZ = 4608
L_X2 = L_U + 4 * USZ
L_H = 122880; H1 = 4160; HSZ = 8320
L_KH = L_H
L_K = L_H + 384
L_V = L_K + 16384
L_M = L_H + 4 * HSZ
L_FLG = L_M
L_CV = L_M + 32
L_XD = L_M + 64
L_GD = L_M + 80
L_GO = L_M + 96
L_G14 = L_M + 112
L_S15 = L_M + 128
L_EW = L_M + 144
L_EC = L_M + 160
L_GO = L_M + 176
L_GO2S = L_GO - L_S15
L_X0 = L_M + 256
XSZ = 2304
LDS_TOTAL = 163840
SPIN_MAX = 400000
WS = "s[36:39]"
NST = 12
QREG = 200

class G:
    stamp = False

def srd(a, d, b, size):
    a(f"s_mov_b32 s{d}, s{b}")
    a(f"s_mov_b32 s{d+1}, s{b+1}")
    a(f"s_mov_b32 s{d+2}, {hex(size)}")
    a(f"s_mov_b32 s{d+3}, 0x00020000")

def T(a, i):
    if G.stamp: a(f"s_memrealtime s[{70+2*i}:{71+2*i}]")

def stamp_out(a):
    if not G.stamp: return
    a("s_waitcnt vmcnt(0)")
    a(f"s_memrealtime s[{70+2*(NST-1)}:{71+2*(NST-1)}]")
    a("s_memtime s[96:97]")
    a("s_waitcnt lgkmcnt(0)")
    for i in range(NST): a(f"v_mov_b32 v{16+i}, s{70+2*i}")
    a("v_mov_b32 v28, s94")
    a("v_mov_b32 v29, s96")
    a("v_mov_b32 v30, 0")
    a("v_mov_b32 v31, 0")
    a("s_lshl_b32 s40, s2, 9")
    a("s_lshl_b32 s41, s3, 6")
    a("s_add_u32 s40, s40, s41")
    a(f"s_add_u32 s40, s40, {hex(WS_ST)}")
    a("s_lshl_b32 s42, s2, 11")
    a("s_lshl_b32 s41, s3, 8")
    a("s_add_u32 s42, s42, s41")
    a(f"s_add_u32 s42, s42, {hex(WS_ST + (1<<20))}")
    a("v_lshlrev_b32 v14, 2, v0")
    a(f"buffer_store_dword v240, v14, {WS}, s42 offen")
    a("v_mov_b32 v14, 0")
    a("s_mov_b64 exec, 1")
    for i in range(4): a(f"buffer_store_dwordx4 v[{16+4*i}:{19+4*i}], v14, {WS}, s40 offen offset:{16*i}")

def lds_wait(a, name, vaddr, vtmp, sleep=1, off=0):
    a.label(name)
    a(f"ds_read_b32 v{vtmp}, v{vaddr} offset:{off}")
    a("s_waitcnt lgkmcnt(0)")
    a(f"v_cmp_ne_u32 vcc, 1, v{vtmp}")
    a(f"s_cbranch_vccz {name}_X")
    if sleep: a(f"s_sleep {sleep}")
    a(f"s_branch {name}")
    a.label(name + "_X")

def spin(a, name, loads, check, scnt, sleep=0):
    a(f"s_mov_b32 s{scnt}, 0")
    a.label(name)
    for l in loads: a(l)
    a("s_waitcnt vmcnt(0)")
    for c in check: a(c)
    a(f"s_cbranch_vccz {name}_X")
    if sleep: a(f"s_sleep {sleep}")
    a(f"s_add_u32 s{scnt}, s{scnt}, 1")
    a(f"s_cmp_lt_u32 s{scnt}, {SPIN_MAX}")
    a(f"s_cbranch_scc1 {name}")
    a.label(name + "_X")

def ctr_addr(a, d, sidx, base):
    a(f"s_lshl_b32 s{d}, s{sidx}, 7")
    a(f"s_add_u32 s{d}, s{d}, {hex(WS_CT + base*128)}")
    a(f"s_add_u32 s{d}, s{d}, s26")
    a(f"s_addc_u32 s{d+1}, s27, 0")

def ctr_wait(a, name, ad, tmp, target, scnt, sleep=2, first=False):
    a(f"s_mov_b32 s{scnt}, 0")
    a.label(name)
    a(f"s_mov_b32 s{tmp}, 0")
    a(f"s_atomic_add s{tmp}, s[{ad}:{ad+1}], 0 glc")
    a("s_waitcnt lgkmcnt(0)")
    a(f"s_cmp_ge_u32 s{tmp}, {target}")
    a(f"s_cbranch_scc1 {name}_X")
    if sleep: a(f"s_sleep {sleep}")
    a(f"s_add_u32 s{scnt}, s{scnt}, 1")
    a(f"s_cmp_lt_u32 s{scnt}, {SPIN_MAX}")
    a(f"s_cbranch_scc1 {name}")
    a.label(name + "_X")

def spf_setup(w, bx, bw, t0, t1):
    return [f"s_lshl_b32 s{t0}, s28, 19", f"s_lshl_b32 s{t1}, s29, 14", f"s_add_u32 s{t0}, s{t0}, s{t1}", f"s_lshl_b32 s{t1}, s{w}, 12", f"s_add_u32 s{t0}, s{t0}, s{t1}",
            f"s_add_u32 s{t0}, s{t0}, 60", f"s_add_u32 s{bx}, s4, s{t0}", f"s_addc_u32 s{bx+1}, s5, 0",
            f"s_lshl_b32 s{t0}, s29, 1", f"s_lshr_b32 s{t1}, s{w}, 1", f"s_add_u32 s{t0}, s{t0}, s{t1}", f"s_mul_i32 s{t0}, s{t0}, 6144",
            f"s_lshl_b32 s{t1}, s28, 8", f"s_add_u32 s{t0}, s{t0}, s{t1}", f"s_and_b32 s{t1}, s{w}, 1", f"s_lshl_b32 s{t1}, s{t1}, 7", f"s_add_u32 s{t0}, s{t0}, s{t1}",
            f"s_add_u32 s{t0}, s{t0}, 60", f"s_add_u32 s{bw}, s6, s{t0}", f"s_addc_u32 s{bw+1}, s7, 0"]
def spf_list(bx, bw, junk, tmp, s0=4):
    out = []
    for st in range(s0, 16):
        for seg in range(3): out.append([f"s_mov_b32 s{tmp}, {st*393216 + seg*2048}", f"s_load_dwordx2 s[{junk}:{junk+1}], s[{bw}:{bw+1}], s{tmp}"])
        for r in range(2): out.append([f"s_load_dwordx2 s[{junk}:{junk+1}], s[{bx}:{bx+1}], {st*128 + r*2048}"])
    return out

def gen(stamp=False, opt=None):
    global OUTF, OUTB
    opt = opt or {}
    OUTF = {0: "", 1: " nt", 2: " sc1", 3: " sc0 sc1"}[opt.get("outf", 2)]
    OUTB = {0: "", 1: " nt", 2: " sc1", 3: " sc0 sc1"}[opt.get("outb", 2)]
    G.stamp = stamp
    a = Asm()
    if opt.get("tok0"): a("s_memrealtime s[92:93]")
    a("s_load_dwordx16 s[4:19], s[0:1], 0")
    a("s_cmp_ge_u32 s2, 256")
    a("s_cbranch_scc1 F_END")
    T(a, 0)
    if stamp: a("s_memtime s[94:95]")
    a("v_lshrrev_b32 v1, 6, v0")
    a("v_and_b32 v0, 63, v0")
    a("s_and_b32 s28, s2, 7")
    a("s_lshr_b32 s29, s2, 3")
    a("v_readfirstlane_b32 s3, v1")
    a("s_and_b32 s30, s28, 1")
    a("s_lshl_b32 s30, s30, 3")
    a("s_and_b32 s31, s29, 7")
    a("s_add_u32 s30, s30, s31")
    a("s_lshr_b32 s31, s28, 1")
    a("s_lshl_b32 s31, s31, 2")
    a("s_lshr_b32 s32, s29, 3")
    a("s_add_u32 s31, s31, s32")
    if opt.get("map16", 1):
        a("s_lshr_b32 s30, s29, 1")
        a("s_and_b32 s31, s29, 1")
        a("s_lshl_b32 s32, s28, 1")
        a("s_add_u32 s31, s31, s32")
    a("s_cmp_lt_u32 s3, 4")
    a("s_cbranch_scc1 F_C")
    gen_L(a, opt)
    a.label("F_C")
    gen_C(a, opt)
    a.label("F_END")
    a("s_endpgm")
    return a

def common2(a):
    a("s_load_dwordx8 s[20:27], s[0:1], 64")
    a("s_and_b32 s32, s29, 3")
    a("s_lshr_b32 s33, s28, 1")
    a("s_lshl_b32 s33, s33, 2")
    a("s_add_u32 s32, s32, s33")
    a("s_and_b32 s33, s28, 1")
    a("s_lshl_b32 s33, s33, 3")
    a("s_lshr_b32 s35, s29, 2")
    a("s_add_u32 s33, s33, s35")
    a("v_lshlrev_b32 v1, 4, v0")

def handoff_addrs(a, w, d):
    a(f"s_and_b32 s40, s{w}, 1")
    a("s_lshl_b32 s41, s31, 1")
    a("s_add_u32 s40, s40, s41")
    a(f"s_lshr_b32 s41, s{w}, 1")
    a(f"s_lshl_b32 s{d+2}, s30, 1")
    a(f"s_add_u32 s{d+2}, s{d+2}, s41")
    a(f"s_mul_i32 s{d+2}, s{d+2}, {4*OP//1024}")
    a(f"s_add_u32 s{d+2}, s{d+2}, s40")
    a(f"s_lshl_b32 s{d+2}, s{d+2}, 10")
    a(f"s_add_u32 s{d+2}, s{d+2}, {hex(WS_O)}")
    a(f"s_lshl_b32 s{d}, s40, 15")
    a(f"s_lshl_b32 s{d+1}, s41, 10")
    a(f"s_add_u32 s{d+3}, s{d}, s{d+1}")
    a(f"s_lshl_b32 s{d}, s30, 11")
    a(f"s_add_u32 s{d}, s{d}, s{d+3}")
    a("s_lshl_b32 s40, s40, 11")
    a(f"s_add_u32 s{d+4}, s40, s{d+1}")
    a(f"s_add_u32 s{d+4}, s{d+4}, {hex(WS_ZP)}")
    a(f"s_lshl_b32 s{d+1}, s30, 6")
    a(f"s_add_u32 s{d+1}, s{d+1}, s{d+4}")

def gen_C(a, opt):
    vX = [2, 3]; vW = [4, 5]
    XF = 16; WF = 80; ACC = 104
    vXo, vXp, vZo, vZp, vFo, vFp, vQ16, vZL = 6, 7, 8, 9, 10, 11, 12, 13
    vK = [200, 201, 202, 203]; vGD, vGO, vXD, vO0, vPR, vCV, vOUT, vONE = 204, 205, 206, 207, 208, 209, 210, 14
    common2(a)
    a("s_lshr_b32 s34, s3, 1")
    a("s_and_b32 s35, s3, 1")
    a("v_and_b32 v16, 15, v0")
    a("v_lshrrev_b32 v17, 4, v0")
    a("v_lshrrev_b32 v18, 1, v16")
    a("v_xor_b32 v18, v18, v17")
    a("v_lshlrev_b32 v18, 4, v18")
    a("v_and_b32 v19, 7, v0")
    a("v_lshl_add_u32 v18, v19, 7, v18")
    a("v_bfe_u32 v19, v0, 3, 1")
    a(f"v_mul_u32_u24 v19, {WSEG}, v19")
    a("s_lshl_b32 s40, s34, 11")
    a(f"s_add_u32 s40, s40, {STAGE}")
    a(f"v_add3_u32 v{vX[0]}, v18, v19, s40")
    a(f"v_xor_b32 v{vX[1]}, 64, v{vX[0]}")
    a("v_bfe_u32 v18, v0, 2, 2")
    a("v_lshlrev_b32 v18, 7, v18")
    a("v_and_b32 v19, 3, v0")
    a("v_lshl_add_u32 v18, v19, 3, v18")
    a("v_bfe_u32 v19, v0, 3, 2")
    a("v_lshlrev_b32 v19, 5, v19")
    a(f"v_lshl_add_u32 v{vO0}, v17, 9, v18")
    a(f"v_add_u32 v{vO0}, v{vO0}, v19")
    a("s_lshl_b32 s40, s35, 6")
    a("s_lshl_b32 s41, s34, 5")
    a("s_or_b32 s40, s40, s41")
    a("v_xor_b32 v19, s40, v19")
    a(f"v_mul_u32_u24 v20, {WSEG}, v17")
    a("v_add3_u32 v18, v18, v19, v20")
    a(f"v_add_u32 v{vW[0]}, {STAGE + 4096}, v18")
    a(f"v_xor_b32 v{vW[1]}, 32, v{vW[0]}")
    a("v_mov_b32 v18, 0")
    a("v_lshlrev_b32 v19, 2, v0")
    a(f"v_add_u32 v20, {L_M}, v19")
    a("ds_write_b32 v20, v18")
    a(f"s_mov_b32 s42, {hex(EPS)}")
    a(f"s_mov_b32 s43, {hex(LOG2E)}")
    a("s_mov_b32 s49, 0x3f803f80")
    order = [(1,0),(1,1),(2,0),(2,1),(0,0),(0,1)]
    def acc(j, i): return ACC + (j*4 + i)*4
    for j in range(6):
        for i in range(16): a(f"v_mov_b32 v{ACC+16*j+i}, {'0' if order[j][0] == 2 else 's42'}")
    handoff_addrs(a, 3, 50)
    a(f"s_mul_i32 s40, s35, {XSZ}")
    a(f"s_add_u32 s58, s40, {L_X0}")
    a(f"s_add_u32 s59, s40, {L_X2}")
    a("s_cmp_eq_u32 s34, 0")
    a("s_cselect_b32 s40, s58, s59")
    a("s_cselect_b32 s41, s59, s58")
    a(f"v_lshlrev_b32 v{vQ16}, 4, v17")
    a(f"v_add_u32 v{vXo}, s40, v1")
    a(f"v_add_u32 v{vXp}, s41, v1")
    a(f"v_add_u32 v{vZo}, s40, v{vQ16}")
    a(f"v_add_u32 v{vZp}, s41, v{vQ16}")
    a("s_lshl_b32 s40, s3, 3")
    a(f"s_add_u32 s41, s40, {L_FLG}")
    a(f"v_mov_b32 v{vFo}, s41")
    a(f"v_xor_b32 v{vFp}, 16, v{vFo}")
    a(f"v_lshl_add_u32 v{vZL}, v16, 6, v{vQ16}")
    a("s_lshl_b32 s40, s34, 3")
    a("s_add_u32 s41, s59, s40")
    a(f"v_add_u32 v{vK[0]}, s41, v1")
    a(f"v_xor_b32 v{vK[1]}, 8, v{vK[0]}")
    a("s_add_u32 s41, s58, s40")
    a(f"v_add_u32 v{vK[3]}, s41, v1")
    a(f"v_xor_b32 v{vK[2]}, 8, v{vK[3]}")
    a("s_lshl_b32 s40, s3, 2")
    a(f"s_add_u32 s41, s40, {L_GD}")
    a(f"v_mov_b32 v{vGD}, s41")
    a(f"s_add_u32 s41, s40, {L_XD}")
    a(f"v_mov_b32 v{vXD}, s41")
    a("v_lshlrev_b32 v18, 1, v17")
    a("v_and_b32 v20, 7, v0")
    a("v_xor_b32 v18, v18, v20")
    a("v_lshlrev_b32 v18, 4, v18")
    a("v_lshrrev_b32 v20, 3, v0")
    a("v_lshl_add_u32 v205, v20, 11, v18")
    a(f"v_mov_b32 v{vONE}, 1")
    a("v_and_b32 v18, 12, v19")
    a(f"v_add_u32 v{vCV}, {L_M}, v18")
    a(f"v_add_u32 v211, {L_EW - L_M}, v{vCV}")
    a(f"v_add_u32 v20, {(L_EC if opt.get('wol', 1) == 2 or opt.get('wloop') else L_EW) - L_M}, v{vCV}")
    a(f"v_subrev_u32 v21, {8 if opt.get('wloop') else 12}, v0")
    a(f"v_cmp_gt_u32 vcc, {16 if opt.get('wloop') else 12}, v21")
    a("v_and_b32 v18, 4, v19")
    a(f"v_add_u32 v18, {L_CV + 16}, v18")
    a("v_cndmask_b32 v211, v211, v20, vcc")
    a("v_and_b32 v21, 31, v0")
    a("v_cmp_lt_u32 vcc, 23, v21")
    a("s_nop 1")
    a("v_cndmask_b32 v211, v211, v18, vcc")
    a("s_lshl_b32 s55, s32, 2")
    a("s_add_u32 s55, s55, s3")
    a("s_lshl_b32 s56, s55, 17")
    a("s_lshl_b32 s40, s33, 7")
    a("s_add_u32 s56, s56, s40")
    a(f"s_mul_i32 s55, s55, {2*OP}")
    a(f"s_add_u32 s55, s55, {hex(WS_O)}")
    if opt.get("pr32", 1):
        a("v_and_b32 v18, 31, v0")
        a("v_add_u32 v18, 33, v18")
        if opt.get("pr1", 1):
            a("s_xor_b32 s40, s35, 1")
            a("s_mul_i32 s40, s40, 66")
            a("v_add_u32 v18, s40, v18")
    else:
        a("v_lshrrev_b32 v18, 5, v0")
        a("v_add_u32 v18, v18, v0")
    a(f"v_lshlrev_b32 v{vPR}, 10, v18")
    a("s_and_b32 s57, s33, 7")
    a("s_mul_i32 s57, s57, 3")
    a("s_lshr_b32 s57, s57, 2" if opt.get("rot2", 1) else "s_mov_b32 s57, 0")
    a(f"v_lshlrev_b32 v{vOUT}, 12, v16")
    a("v_bfe_u32 v18, v0, 4, 1")
    a(f"v_lshl_add_u32 v{vOUT}, v18, 5, v{vOUT}")
    a("v_lshrrev_b32 v18, 5, v0")
    a(f"v_lshl_add_u32 v{vOUT}, v18, 4, v{vOUT}")
    a("s_mov_b32 s44, 0")
    a("s_mov_b32 s45, 1")
    a(f"s_mov_b32 s46, {hex((-2*STAGE) & 0xffffffff)}")
    a(f"s_mov_b32 s47, {STAGE}")
    a("s_waitcnt lgkmcnt(0)")
    srd(a, 36, 26, WS_SIZE)
    srd(a, 60, 22, 8 << 20)
    srd(a, 64, 26, WS_SIZE)
    if opt.get("tlb"):
        sh = {2048: 21, 512: 19, 256: 18, 64: 16}[opt["tlb"]]
        per = max(1, (4 << 20 >> sh) // 32 if opt.get("tlbs") else (4 << 20 >> sh))
        a(f"v_and_b32 v20, {per-1}, v0")
        if opt.get("tlbs"):
            a(f"s_mul_i32 s40, s29, {per}")
            a("v_add_u32 v20, s40, v20")
        a(f"v_lshlrev_b32 v20, {sh}, v20")
        a(f"v_and_b32 v20, {hex((4<<20)-1)}, v20")
        a("v_add_u32 v20, 0x780, v20")
        lst = [[(10, 4, 0), (12, 4, 0), (26, 256, 0)], [(14, 4, 0), (18, 4, 0), (26, 256, 1)], [(22, 8, 0), (8, 2, 0), (26, 256, 2), (26, 256, 4)], [(22, 8, 1), (20, 0, 0), (26, 256, 3), (16, 0, 0)]]
        for w in range(4):
            a(f"s_cmp_lg_u32 s3, {w}")
            a(f"s_cbranch_scc1 F_TL{w}")
            for b, size, k in lst[w]:
                srd(a, 4, b, (size << 20) if size else 2048)
                a(f"s_mov_b32 s40, {k << 22}")
                a("buffer_load_dword v251, v20, s[4:7], s40 offen")
            a.label(f"F_TL{w}")
    if opt.get("spf"):
        for x in spf_setup(3, 98, 100, 40, 41): a(x)
        for grp in spf_list(98, 100, 58, 40)[:opt.get("spc", 18)]:
            for x in grp: a(x)
    a("s_cmp_lg_u32 s2, 0")
    a("s_cbranch_scc1 F_NOINIT")
    for i in range(4): a(f"v_mov_b32 v{20+i}, 0")
    a("s_mul_i32 s40, s3, 6144")
    a(f"s_add_u32 s40, s40, {hex(WS_CT)}")
    a("s_add_u32 s41, s40, 4096")
    for i in range(6): a(f"buffer_store_dwordx4 v[20:23], v1, {WS}, s{40 if i < 4 else 41} offen offset:{(i%4)*1024} sc1")
    a("s_mov_b32 s40, 1")
    a("s_waitcnt vmcnt(0)")
    a("s_atomic_add s40, s[24:25], 0")
    a("s_waitcnt lgkmcnt(0)")
    a.label("F_NOINIT")
    a("s_lshl_b32 s40, s31, 2")
    a("s_lshl_b32 s41, s35, 1")
    a("s_add_u32 s40, s40, s41")
    a("s_add_u32 s40, s40, s34")
    ctr_addr(a, 10, 40, CT_P)
    a("s_lshl_b32 s40, s30, 1")
    a("s_add_u32 s40, s40, s34")
    ctr_addr(a, 12, 40, CT_O)
    a("s_lshl_b32 s40, s32, 1")
    a("s_add_u32 s40, s40, s34")
    ctr_addr(a, 14, 40, CT_O)
    a("s_lshr_b32 s40, s31, 1")
    a("s_lshl_b32 s40, s40, 2")
    a("s_lshl_b32 s16, 1, s40")
    srd(a, 4, 8, 2 << 20)
    a("s_lshl_b32 s68, s3, 10")
    a("s_lshl_b32 s69, s3, 14")
    a("s_lshl_b32 s40, s33, 7")
    a("s_add_u32 s69, s69, s40")

    def ldX(par, i, ks):
        return ('ld', 'lgkm', f"ds_read_b128 {vr(XF+par*32+(i*2+ks)*4,4)}, v{vX[ks]} offset:{(i&1)*2*WSEG + (i>>1)*1024}", f"X{par}.{i}.{ks}")
    def ldW(j):
        seg, half = order[j]; b = j % 3; out = []
        for ks in range(2):
            for jh in range(2):
                out.append(('ld', 'lgkm', f"ds_read_b64_tr_b16 {vr(WF+b*8+ks*4+jh*2,2)}, v{vW[half]} offset:{(ks*3+seg)*1024 + jh*512}", f"W{b}.{ks}.{jh}"))
        return out
    def mf(par, j, i, ks):
        b = j % 3; d = acc(j, i)
        A = vr(XF+par*32+(i*2+ks)*4, 4); B = vr(WF+b*8+ks*4, 4)
        if order[j][0] == 0: A, B = B, A
        return ('use', f"v_mfma_f32_16x16x32_bf16 {vr(d,4)}, {A}, {B}, {vr(d,4)}", [f"X{par}.{i}.{ks}", f"W{b}.{ks}.0", f"W{b}.{ks}.1"])
    if opt.get("spf"): a("s_waitcnt lgkmcnt(0)")
    a("s_barrier")
    T(a, 1)
    pro = ldW(0)[:2] + [ldX(0,0,0)] + ldW(0)[2:] + [ldX(0,0,1), ldX(0,1,0), ldX(0,1,1), ldX(0,2,0), ldX(0,2,1)] + ldW(1) + [ldX(0,3,0), ldX(0,3,1)]
    for it in pro: a(it[2])
    body = []
    for par in range(2):
        pend = []; np_ = par ^ 1
        for j in range(6):
            if j <= 3: pend += ldW(j+2)
            n = 0
            for i in range(4):
                for ks in range(2):
                    m = mf(par, j, i, ks); n += 1
                    b = j % 3
                    if n == 1: m = (m[0], m[1], m[2] + [f"W{b}.1.0", f"W{b}.1.1"] + ([f"X{par}.0.1", f"X{par}.1.0", f"X{par}.1.1"] if j == 0 else []))
                    if n == 5 and j == 0: m = (m[0], m[1], m[2] + [f"X{par}.3.0", f"X{par}.3.1", f"X{par}.2.1", "W1.0.0", "W1.0.1", "W1.1.0", "W1.1.1"])
                    if n == 1 and j == 4: m = (m[0], m[1], m[2] + ["W2.0.0", "W2.0.1", "W2.1.0", "W2.1.1"])
                    body.append(m)
                    per = 1
                    if j == 3 and n == 5:
                        pend += [('i', "s_add_u32 s45, s45, 1"), ('i', "s_cmp_eq_u32 s45, 3"), ('i', "s_cselect_b32 s48, s46, s47"), ('i', "s_cselect_b32 s45, 0, s45")]
                    if j == 3 and n >= 5: per = 2
                    if j == 3 and n == 7:
                        pend += [('i', f"v_add_u32 v{r}, s48, v{r}") for r in (vW[0], vX[0], vX[1], vW[1])]
                    if j == 2 and n == 6 and par == 0: pend += [('i', "s_add_u32 s44, s44, 1")]
                    if j == 4 and n == 1:
                        w0 = ldW(0)
                        pend += [('i', f"@BAR{par}")] + w0[:2] + [ldX(np_,0,0)] + w0[2:] + [ldX(np_,0,1), ldX(np_,1,0), ldX(np_,1,1)]
                    if j == 4 and n in (2, 3): per = 2
                    if j == 5 and n == 1:
                        pend += [ldX(np_,2,0), ldX(np_,2,1)] + ldW(1) + [ldX(np_,3,0), ldX(np_,3,1)]
                    if j == 5 and n <= 3: per = 2
                    if n == 8 and j not in (3,): per = 0
                    for _ in range(per):
                        if pend: body.append(pend.pop(0))
            assert not pend, (j, pend)
    lines = insert_waits([(it[1], it[3]) for it in pro], body)
    a(".p2align 6")
    a.label("F_CLOOP")
    for l in lines:
        if l.startswith("@BAR"):
            par = l[4:]
            a("s_cmp_lt_u32 s44, 8")
            a(f"s_cbranch_scc0 F_CNB{par}")
            a("s_barrier")
            a.label(f"F_CB{par}")
        else: a(l)
    a("s_cbranch_scc1 F_CLOOP")
    if opt.get("cprio", 1): a("s_setprio 3")
    T(a, 2)
    if opt.get("g1only"):
        stamp_out(a); a("s_endpgm"); gen_C_tail(a, vGD, vONE, vCV); return

    PKF = 212; VF = 228; TT = 244; ONES = 252
    KV = acc(2, 0); Z = acc(3, 0); PQF = 84
    def phi8(s0, s1, dst, pk=False):
        src = [s0+i for i in range(4)] + [s1+i for i in range(4)]
        if pk:
            for i in range(0, 8, 2): a(f"v_pk_mul_f32 {vr(TT+i,2)}, {vr(src[i],2)}, s[46:47]")
        else:
            for i in range(8): a(f"v_mul_f32 v{TT+i}, s43, v{src[i]}")
        for i in range(8):
            a(f"v_exp_f32 v{TT+i}, v{TT+i} clamp")
            a(f"v_max_f32 v{src[i]}, s42, v{src[i]}")
        if pk:
            for i in range(0, 8, 2): a(f"v_pk_add_f32 {vr(TT+i,2)}, {vr(TT+i,2)}, {vr(src[i],2)}")
        else:
            for i in range(8): a(f"v_add_f32 v{TT+i}, v{TT+i}, v{src[i]}")
        for i in range(4): a(f"v_cvt_pk_bf16_f32 v{dst+i}, v{TT+2*i}, v{TT+2*i+1}")
    PKK = bool(opt.get("pkk", 0))
    a("s_mov_b32 s46, s43")
    a("s_mov_b32 s47, s43")
    phi8(acc(0, 0), acc(0, 1), PKF, PKK)
    for i in range(4): a(f"v_mov_b32 v{ONES+i}, s49")
    for u in range(2):
        for i in range(4):
            s = acc(2+u, i); d = VF + u*8 + i*2
            a(f"v_cvt_pk_bf16_f32 v{d}, v{s}, v{s+1}")
            a(f"v_cvt_pk_bf16_f32 v{d+1}, v{s+2}, v{s+3}")
    seq = [(0,0),(1,0),(0,1),(1,1)]
    for n, (t, rho) in enumerate(seq):
        A = vr(PKF + (n & 1)*4, 4)
        ms = []
        for u in (1, 0):
            d = KV + (t*2+u)*4
            ms.append(f"v_mfma_f32_16x16x32_bf16 {vr(d,4)}, {A}, {vr(VF+u*8+rho*4,4)}, {'0' if rho == 0 else vr(d,4)}")
        d = Z + t*4
        ms.append(f"v_mfma_f32_16x16x32_bf16 {vr(d,4)}, {A}, {vr(ONES,4)}, {'0' if rho == 0 else vr(d,4)}")
        for m in ms: a(m)
        if n < 3:
            t2, r2 = seq[n+1]
            phi8(acc(t2, 2*r2), acc(t2, 2*r2+1), PKF + ((n+1) & 1)*4, PKK)
    a(f"ds_write_b128 v{vXo}, {vr(KV+4,4)}")
    a(f"ds_write_b128 v{vXo}, {vr(KV+12,4)} offset:1024")
    a(f"ds_write_b128 v{vZo}, {vr(Z+4,4)} offset:2048")
    a(f"ds_write_b32 v{vFo}, v{vONE}")
    R0 = 212
    a.label("F_XA")
    a(f"ds_read_b32 v15, v{vFp}")
    a(f"ds_read_b128 {vr(R0,4)}, v{vXp} offset:1024")
    a(f"ds_read_b128 {vr(R0+4,4)}, v{vXp}")
    a(f"ds_read_b128 {vr(R0+8,4)}, v{vZp} offset:2048")
    a("s_waitcnt lgkmcnt(0)")
    a("v_cmp_ne_u32 vcc, 1, v15")
    a("s_cbranch_vccnz F_XA")
    for i in range(4): a(f"v_add_f32 v{R0+i}, v{R0+i}, v{KV+i}")
    for i in range(4): a(f"v_add_f32 v{R0+4+i}, v{R0+4+i}, v{KV+8+i}")
    for i in range(4): a(f"v_cvt_pk_bf16_f32 v{R0+12+i}, v{R0+2*i}, v{R0+2*i+1}")
    PF_ = "" if opt.get("plainp") else " sc1"
    a(f"buffer_store_dwordx4 {vr(R0+12,4)}, v1, {WS}, s50 offen{PF_}")
    for i in range(4): a(f"v_add_f32 v{R0+8+i}, v{R0+8+i}, v{Z+i}")
    a("s_mov_b32 exec_lo, 0x00010001")
    a("s_mov_b32 exec_hi, 0x00010001")
    a(f"buffer_store_dwordx4 {vr(R0+8,4)}, v{vQ16}, {WS}, s51 offen{PF_}")
    a("s_mov_b64 exec, -1")
    T(a, 3)
    ZL = 100; KL = 16; KS = 104; EP = 112; SEL = 140; KF = 124; ZF = 132
    for i in range(4): a(f"v_mov_b32 v{EP+i}, s42")
    a("v_bfe_u32 v116, v0, 2, 2")
    a("v_lshrrev_b32 v117, 4, v0")
    a("v_cmp_eq_u32 vcc, v116, v117")
    a("v_and_b32 v116, 1, v0")
    a("v_lshlrev_b32 v116, 4, v116")
    a("v_mov_b32 v117, 0x3f80")
    a("v_lshlrev_b32 v116, v116, v117")
    a("v_cndmask_b32 v116, 0, v116, vcc")
    a("v_and_b32 v117, 2, v0")
    a("v_cmp_eq_u32 vcc, 0, v117")
    for r in (2, 3, 4, 5): a(f"v_mov_b32 v{SEL+r}, 0")
    a(f"v_cndmask_b32 v{SEL}, 0, v116, vcc")
    a(f"v_cndmask_b32 v{SEL+6}, 0, v116, vcc")
    a(f"v_cndmask_b32 v{SEL+1}, v116, v{SEL+2}, vcc")
    a(f"v_cndmask_b32 v{SEL+7}, v116, v{SEL+2}, vcc")
    if opt.get("r2", 1):
        NB = opt.get("nb", 3); KS2 = 148
        for i in range(NB): phi8(acc(4, i), acc(5, i), PQF + i*4)
        a("s_mov_b32 s17, 1")
        a("s_waitcnt vmcnt(0)")
        a("s_atomic_add s17, s[10:11], 0 glc")
        for i in range(NB, 4): phi8(acc(4, i), acc(5, i), PQF + i*4)
        a("s_waitcnt lgkmcnt(0)")
        T(a, 4)
        a("s_cmp_ge_u32 s17, 15")
        a("s_cbranch_scc1 F_P2_X")
        ctr_wait(a, "F_P2", 10, 17, 16, 45, sleep=opt.get("sl2", 3))
        T(a, 5)
        a(f"buffer_load_dwordx4 {vr(ZL,4)}, v{vZL}, {WS}, s54 offen sc1")
        kv_issue(a, KL, opt)
        zr = [f"v_add_f32_dpp v{120+i}, v{ZL+i}, v{ZL+i} row_ror:8 row_mask:0xf bank_mask:0xf" for i in range(4)]
        for sh in (4, 2, 1): zr += [f"v_add_f32_dpp v{120+i}, v{120+i}, v{120+i} row_ror:{sh} row_mask:0xf bank_mask:0xf" for i in range(4)]
        zr += [f"v_cvt_pk_bf16_f32 v{ZF}, v120, v121", f"v_cvt_pk_bf16_f32 v{ZF+1}, v122, v123"]
        for p in range(16):
            if p % 2 == 0: a(f"s_waitcnt vmcnt({14-p})")
            for t in range(2):
                d = (KS if p % 2 == 0 else KS2) + 4*t
                a(f"v_mfma_f32_16x16x32_bf16 {vr(d,4)}, {vr(SEL+4*t,4)}, {vr(KL+4*p,4)}, {'0' if p < 2 else vr(d,4)}")
                if zr: a(zr.pop(0))
        for i in range(8): a(f"v_add_f32 v{KS+i}, v{KS+i}, v{KS2+i}")
    else:
        NQ1 = 2
        phi8(acc(4, 0), acc(5, 0), PQF)
        DYN = opt.get("dyn", 0)
        a("s_lshl_b32 s17, 1, s30" if DYN else "s_mov_b32 s17, 1")
        a("s_mov_b32 s19, s17")
        if opt.get("st2"): T(a, 8)
        a("s_waitcnt vmcnt(0)")
        if opt.get("st2"): T(a, 9)
        a("s_atomic_add s17, s[10:11], 0 glc")
        phi8(acc(4, 1), acc(5, 1), PQF + 4)
        a("s_waitcnt lgkmcnt(0)")
        if DYN:
            a("s_or_b32 s17, s17, s19")
            a("s_cmp_lg_u32 s17, 0xffff")
        else:
            a("s_cmp_lt_u32 s17, 15")
        a("s_cbranch_scc1 F_K1N")
        T(a, 4)
        def capture(fn):
            n = len(a.lines); fn(); out = a.lines[n:]; del a.lines[n:]; return out
        def zred():
            for i in range(4): a(f"v_add_f32_dpp v{120+i}, v{ZL+i}, v{ZL+i} row_ror:8 row_mask:0xf bank_mask:0xf")
            for sh in (4, 2, 1):
                for i in range(4): a(f"v_add_f32_dpp v{120+i}, v{120+i}, v{120+i} row_ror:{sh} row_mask:0xf bank_mask:0xf")
            a(f"v_cvt_pk_bf16_f32 v{ZF}, v120, v121")
            a(f"v_cvt_pk_bf16_f32 v{ZF+1}, v122, v123")
        def ksum(p):
            out = []
            if p % 2 == 0: out.append(f"s_waitcnt vmcnt({14-p})")
            for t in range(2):
                out.append(f"v_mfma_f32_16x16x32_bf16 {vr(KS+4*t,4)}, {vr(SEL+4*t,4)}, {vr(KL+4*p,4)}, {'0' if p == 0 else vr(KS+4*t,4)}")
            return out
        zld = f"buffer_load_dwordx4 {vr(ZL,4)}, v{vZL}, {WS}, s54 offen sc1"
        ld = capture(lambda: kv_issue(a, KL, opt))
        va = capture(lambda: [phi8(acc(4, i), acc(5, i), PQF + i*4) for i in range(NQ1, 4)])
        zr = capture(zred)
        k1 = opt.get("k1", 2)
        a(zld)
        for l in ld:
            a(l)
            if l.startswith("buffer_load"):
                for _ in range(k1):
                    if va: a(va.pop(0))
        va = va + ["s_waitcnt vmcnt(16)"] + zr
        k2 = -(-len(va) // 16)
        for p in range(16):
            for _ in range(k2):
                if va: a(va.pop(0))
            for l in ksum(p): a(l)
        a("s_branch F_K2X")
        if DYN:
            a.label("F_K1N")
            def issue_mask(m, tag):
                for p in range(16):
                    a(f"s_bitcmp1_b32 s{m}, {p}")
                    a(f"s_cbranch_scc0 F_{tag}{p}")
                    a(f"s_add_u32 s40, s53, {(p>>1)*4096}")
                    a(f"buffer_load_dwordx4 {vr(KL+4*p,4)}, v1, {WS}, s40 offen offset:{(p&1)*2048} sc1")
                    a.label(f"F_{tag}{p}")
            issue_mask(17, "DA")
            for i in range(8): a(f"v_mov_b32 v{KS+i}, 0")
            for i in range(NQ1, 4): phi8(acc(4, i), acc(5, i), PQF + i*4)
            T(a, 4)
            a("s_mov_b32 s19, s17")
            a("s_mov_b32 s59, s17")
            a("s_mov_b32 s45, 0")
            a.label("F_DL")
            a("s_cmp_eq_u32 s19, 0xffff")
            a("s_cbranch_scc1 F_DS")
            a("s_mov_b32 s17, 0")
            a("s_atomic_add s17, s[10:11], 0 glc")
            a.label("F_DS")
            a("s_waitcnt vmcnt(0)")
            for p in range(16):
                a(f"s_bitcmp1_b32 s59, {p}")
                a(f"s_cbranch_scc0 F_DM{p}")
                for t in range(2): a(f"v_mfma_f32_16x16x32_bf16 {vr(KS+4*t,4)}, {vr(SEL+4*t,4)}, {vr(KL+4*p,4)}, {vr(KS+4*t,4)}")
                a.label(f"F_DM{p}")
            a("s_cmp_eq_u32 s19, 0xffff")
            a("s_cbranch_scc1 F_DX")
            a("s_add_u32 s45, s45, 1")
            a("s_waitcnt lgkmcnt(0)")
            a(f"s_cmp_gt_u32 s45, {SPIN_MAX}")
            a("s_cselect_b32 s17, 0xffff, s17")
            a("s_andn2_b32 s59, s17, s19")
            a("s_cbranch_scc1 F_DI")
            a(f"s_sleep {opt.get('sl2', 3)}")
            a("s_branch F_DL")
            a.label("F_DI")
            a("s_mov_b32 s19, s17")
            a("s_cmp_lg_u32 s17, 0xffff")
            a("s_cbranch_scc1 F_DJ")
            T(a, 5)
            a(zld)
            a.label("F_DJ")
            issue_mask(59, "DB")
            a("s_branch F_DL")
            a.label("F_DX")
            for l in zr: a(l)
        else:
            a.label("F_K1N")
            for i in range(NQ1, 4): phi8(acc(4, i), acc(5, i), PQF + i*4)
            T(a, 4)
            ctr_wait(a, "F_P2", 10, 17, 16, 45, sleep=opt.get("sl2", 3))
            T(a, 5)
            a(zld)
            for l in ld: a(l)
            a("s_waitcnt vmcnt(16)")
            for l in zr: a(l)
            for p in range(16):
                for l in ksum(p): a(l)
    a.label("F_K2X")
    for i in range(4): a(f"v_cvt_pk_bf16_f32 v{136+i}, v{KS+2*i}, v{KS+2*i+1}")
    T(a, 6)
    a(f"ds_write_b128 v{vXp}, {vr(136,4)}")
    a(f"ds_write_b64 v{vZp}, {vr(ZF,2)} offset:2048")
    a(f"ds_write_b32 v{vFo}, v{vONE} offset:4")
    if not opt.get("wol", 1):
        lds_wait(a, "F_WGD2", vCV, 15, off=L_GD - L_M)
        wo_c(a, range(0, 5))
    a.label("F_XB")
    a(f"ds_read_b32 v15, v{vFp} offset:4")
    a(f"ds_read_b64 {vr(ZF+2,2)}, v{vZo} offset:2048")
    for k in range(4): a(f"ds_read_b64 {vr(KF+2*k,2)}, v{vK[k]}")
    a("s_waitcnt lgkmcnt(0)")
    a("v_cmp_ne_u32 vcc, 1, v15")
    a("s_cbranch_vccnz F_XB")
    DEN = 140; NUM = 156; OO = 212
    for i in range(4): a(f"v_mfma_f32_16x16x32_bf16 {vr(DEN+4*i,4)}, {vr(ZF,4)}, {vr(PQF+4*i,4)}, {vr(EP,4)}")
    for i in range(4):
        for u in range(2):
            a(f"v_mfma_f32_16x16x32_bf16 {vr(NUM+8*i+4*u,4)}, {vr(KF+4*u,4)}, {vr(PQF+4*i,4)}, 0")
    a(f"ds_write_b32 v{vXD}, v{vONE}")
    if not opt.get("wol", 1): wo_c(a, range(5, 10))
    a("s_mov_b32 s17, 0")
    a("s_atomic_add s17, s[14:15], 0 glc")
    a("ds_read_b32 v10, v211")
    for i in range(4): a(f"v_rcp_f32 v{DEN+4*i}, v{DEN+4*i}")
    for i in range(4):
        for r in range(8): a(f"v_mul_f32 v{NUM+8*i+r}, v{NUM+8*i+r}, v{DEN+4*i}")
        for r in range(4): a(f"v_cvt_pk_bf16_f32 v{OO+4*i+r}, v{NUM+8*i+2*r}, v{NUM+8*i+2*r+1}")
        a(f"buffer_store_dwordx4 {vr(OO+4*i,4)}, v1, {WS}, s52 offen sc1")
        if i < 3: a(f"s_add_u32 s52, s52, {OP}")
    T(a, 7)
    WOL2 = opt.get("wol", 1) == 2
    if WOL2:
        lds_wait(a, "F_WGD2", vCV, 15, off=L_GD - L_M)
        wo_c(a, range(0, 10))
    vO = [2, 3, 4, 5]
    AC2 = 16; WO = 48; OF = 80
    a(f"v_add_u32 v6, {OP}, v1")
    if opt.get("opti", 0):
        a("s_add_u32 s53, s55, 4096")
        for h4 in range(4):
            for rt in range(2): a(f"buffer_load_dwordx4 {vr(OF+h4*8+rt*4,4)}, v{1 if rt == 0 else 6}, {WS}, s55 offen offset:{h4*1024} sc1")
        a(f"buffer_load_dword v9, v{vPR}, {WS}, s55 offen offset:1008 sc1")
        for h4 in range(4):
            for rt in range(2): a(f"buffer_load_dwordx4 {vr(OF+32+h4*8+rt*4,4)}, v{1 if rt == 0 else 6}, {WS}, s53 offen offset:{h4*1024} sc1")
        a("s_mov_b32 s46, 0x11111100")
        a("s_mov_b32 s50, 0")
        a("s_mov_b32 s51, 4")
        a("s_mov_b32 s52, s55")
    else:
        a("s_mov_b32 s46, 0x11111111")
        a("s_mov_b32 s50, -1")
        a("s_mov_b32 s51, -1")
    for i in range(32): a(f"v_mov_b32 v{AC2+i}, 0")
    a("s_mov_b32 s47, 0")
    a("s_mov_b32 s54, 0x76432105")
    a("s_mov_b32 s44, 0")
    def ldO(st, h4, rt, sreg):
        return ('ld', 'vm', f"buffer_load_dwordx4 {vr(OF+st*32+h4*8+rt*4,4)}, v{1 if rt == 0 else 6}, s[64:67], s{sreg} offen offset:{h4*1024} sc1", f"O{st}.{h4}.{rt}")
    def ldWo(hp, h4):
        return [('ld', 'lgkm', f"ds_read_b64_tr_b16 {vr(WO+hp*16+ct*4+jh*2,2)}, v{vO[ct]} offset:{(h4*32+16*jh)*128}", f"Wo{hp}.{ct}.{jh}") for ct in range(4) for jh in range(2)]
    def pick(st):
        return ["s_and_b32 s45, s46, s47", f"s_cselect_b32 s66, s38, 0", f"s_ff1_i32_b32 s{50+st}, s45", f"s_bitset0_b32 s46, s{50+st}",
                f"s_lshl_b32 s{52+st}, s{50+st}, 10", f"s_add_u32 s{52+st}, s{52+st}, s55"]
    def setvO(st):
        return [f"s_lshr_b32 s48, s54, s{50+st}", "s_and_b32 s48, s48, 15", "s_lshl_b32 s48, s48, 14"], \
               [f"v_add_u32 v{vO[0]}, s48, v{vO0}"] + [f"v_xor_b32 v{vO[ct]}, {ct*32}, v{vO[0]}" for ct in range(1, 4)]
    pro = [ldO(st, h4, rt, 52+st) for st in range(2) for h4 in range(4) for rt in range(2)] + ldWo(0, 0)
    body = []
    for st in range(2):
        body.append(('i', f"@EMP{st}"))
        body.append(('use', f"@CHK{st}", [] if opt.get("fine", 1) else [f"O{st}.{h4}.{rt}" for h4 in range(4) for rt in range(2)]))
        II = lambda l: [('i', x) for x in l]
        for h4 in range(4):
            hp = h4 & 1
            w = ldWo(hp ^ 1, (h4 + 1) & 3)
            gaps = [w[0:2], w[2:4], w[4:6], w[6:8], [], [], [], []]
            if h4 == 0:
                gaps[7] = II(["s_and_b32 s45, s46, s47", f"s_cbranch_scc0 F_GP{st}", f"F_GQ{st}:"])
            if h4 == 1:
                pk = pick(st)
                gaps[0] += II(pk[0:1]); gaps[1] += II(pk[1:2]); gaps[2] += II(pk[2:3]); gaps[3] += II(pk[4:5])
                gaps[4] = II([pk[5], pk[3]])
                gaps[5] = [ldO(st, 0, 0, 52+st)] + II(setvO(st ^ 1)[0][0:1])
                gaps[6] = [ldO(st, 0, 1, 52+st)] + II(setvO(st ^ 1)[0][1:2])
                gaps[7] = II(setvO(st ^ 1)[0][2:3])
            if h4 == 2:
                gaps[4] = [ldO(st, 1, 0, 52+st)] + II(setvO(st ^ 1)[1][0:1])
                gaps[5] = [ldO(st, 1, 1, 52+st)] + II(setvO(st ^ 1)[1][1:2])
                gaps[6] = II(setvO(st ^ 1)[1][2:4])
            if h4 == 3:
                gaps[4] = [ldO(st, 2, 0, 52+st)]
                gaps[5] = [ldO(st, 2, 1, 52+st)]
            n = 0
            for ct in range(4):
                for rt in range(2):
                    d = AC2 + (rt*4+ct)*4
                    tg = [f"Wo{hp}.{ct}.0", f"Wo{hp}.{ct}.1"]
                    if ct == 0 and rt == 0: tg += [f"Wo{hp}.3.0", f"Wo{hp}.3.1", f"O{st}.{h4}.0", f"O{st}.{h4}.1"]
                    body.append(('use', f"v_mfma_f32_16x16x32_bf16 {vr(d,4)}, {vr(WO+hp*16+ct*4,4)}, {vr(OF+st*32+h4*8+rt*4,4)}, {vr(d,4)}", tg))
                    body += gaps[n]; n += 1
        body += [ldO(st, 3, 0, 52+st), ldO(st, 3, 1, 52+st)]
    lines = insert_waits([(it[1], it[3]) for it in pro], body)
    a("s_mov_b32 s58, 0")
    a("s_mov_b32 s18, 1")
    a("s_branch F_GR0")
    if opt.get("g2wait") and G.stamp:
        a.label("F_DBGW")
        a("s_memrealtime s[40:41]")
        a("s_waitcnt lgkmcnt(0)")
        a("s_sub_u32 s40, s40, s70")
        a(f"s_cmp_lt_u32 s40, {opt['g2wait']}")
        a("s_cbranch_scc1 F_DBGW")
        T(a, 5)
    a(".p2align 6")
    a.label("F_GLOOP")
    for l in lines:
        if l.startswith("@EMP"):
            st = int(l[4:])
            a(f"s_cmp_lt_i32 s{50+st}, 0")
            a(f"s_cbranch_scc1 F_GE{st}")
        elif l.startswith("@CHK"):
            st = int(l[4:]); b = OF + st*32
            a.label(f"F_GC{st}")
            a.label(f"F_GK{st}")
            if G.stamp:
                a("s_memrealtime s[40:41]"); a("s_lshl_b32 s45, s44, 1"); a(f"s_add_u32 m0, s45, {st}"); a("s_waitcnt lgkmcnt(0)")
                a("v_writelane_b32 v240, s40, m0"); a(f"s_add_u32 m0, m0, 16"); a("s_nop 3"); a(f"v_writelane_b32 v240, s{50+st}, m0")
                a(f"s_add_u32 m0, m0, 16"); a("s_nop 3"); a(f"v_writelane_b32 v240, s58, m0")
        else: a(l)
    a("s_add_u32 s44, s44, 1")
    a("s_cmp_lt_u32 s44, 4")
    a("s_cbranch_scc1 F_GLOOP")
    T(a, 10)
    P = 48
    a("s_add_u32 s57, s56, 65536")
    a("s_waitcnt lgkmcnt(0)")
    for rt in range(2):
        for cp in range(2):
            b = P + (rt*2+cp)*4
            for k in range(2):
                s = AC2 + (rt*4+cp*2+k)*4
                a(f"v_cvt_pk_bf16_f32 v{b+2*k}, v{s}, v{s+1}")
                a(f"v_cvt_pk_bf16_f32 v{b+2*k+1}, v{s+2}, v{s+3}")
    for rt in range(2):
        for cp in range(2):
            b = P + (rt*2+cp)*4
            a(f"v_permlane16_swap_b32 v{b}, v{b+2}")
            a(f"v_permlane16_swap_b32 v{b+1}, v{b+3}")
            a(f"buffer_store_dwordx4 {vr(b,4)}, v{vOUT}, s[60:63], s{56+rt} offen offset:{cp*64}{OUTF}")
    stamp_out(a)
    a("s_endpgm")
    gen_C_tail(a, vGD, vONE, vCV)
    def refresh_tail():
        a("s_waitcnt lgkmcnt(0)")
        a("v_cmp_ne_u32 s[40:41], 1, v10")
        a("s_lshr_b32 s17, s17, 2")
        a("s_or_b32 s45, s40, s41")
        a("s_lshr_b32 s40, s45, 1")
        a("s_or_b32 s45, s45, s40")
        a("s_lshr_b32 s40, s45, 2")
        a("s_or_b32 s45, s45, s40")
        a("s_andn2_b32 s47, s17, s45")
        a(f"s_cmp_gt_u32 s58, {SPIN_MAX}")
        a("s_cselect_b32 s47, -1, s47")
        a("s_and_b32 s47, s47, s46")
    def refresh_head():
        a("s_mov_b32 s17, 0")
        a("s_atomic_add s17, s[14:15], 0 glc")
        a("ds_read_b32 v10, v211")
    for st in range(2):
        a.label(f"F_GP{st}")
        a("s_cmp_eq_u32 s46, 0")
        a(f"s_cbranch_scc1 F_GQ{st}")
        a(f"s_cmp_lt_i32 s{50+(st^1)}, 0")
        a(f"s_cbranch_scc1 F_GQ{st}")
        refresh_head(); refresh_tail()
        a(f"s_branch F_GQ{st}")
        a.label(f"F_GS{st}")
        a("s_cmp_eq_u32 s18, 0")
        a(f"s_cbranch_scc1 F_GT{st}")
        a(f"s_waitcnt vmcnt({10 if WOL2 else 0})")
        a("s_atomic_add s16, s[12:13], 0")
        a("s_mov_b32 s18, 0")
        if WOL2:
            a("s_waitcnt vmcnt(0)")
            a(f"ds_write_b32 v{vXD}, v{vONE} offset:{L_EC - L_XD}")
        a.label(f"F_GT{st}")
        a(f"s_sleep {opt.get('sl3', 6)}")
        a.label(f"F_GE{st}")
        a("s_add_u32 s58, s58, 1")
        refresh_head()
        a.label(f"F_GR{st}")
        refresh_tail()
        a(f"s_cbranch_scc0 F_GS{st}")
        if opt.get("st2"): pass
        elif st == 0: T(a, 9)
        else: T(a, 8)
        for x in pick(st): a(x)
        for h4 in range(4):
            for rt in range(2): a(ldO(st, h4, rt, 52+st)[2].replace("s[64:67]", WS))
        if st == 0:
            a("s_cmp_eq_u32 s18, 0")
            a("s_cbranch_scc1 F_GU")
            a(f"s_waitcnt vmcnt({18 if WOL2 else 8})")
            a("s_atomic_add s16, s[12:13], 0")
            a("s_mov_b32 s18, 0")
            if WOL2:
                a("s_waitcnt vmcnt(8)")
                a(f"ds_write_b32 v{vXD}, v{vONE} offset:{L_EC - L_XD}")
            a.label("F_GU")
        for x in setvO(st)[0] + setvO(st)[1]: a(x)
        for it in ldWo(0, 0): a(it[2])
        a(f"s_cmp_lt_i32 s{50+(st^1)}, 0")
        a(f"s_cbranch_scc0 F_GN{st}")
        for x in pick(st ^ 1): a(x)
        for h4 in range(4):
            for rt in range(2): a(ldO(st ^ 1, h4, rt, 52+(st^1))[2])
        if not opt.get("fine", 1): a("s_waitcnt vmcnt(8)")
        a(f"s_branch F_GC{st}")
        a.label(f"F_GN{st}")
        a("s_waitcnt vmcnt(0)")
        a(f"s_branch F_GC{st}")

def kv_issue(a, KL, opt):
    a("s_lshl_b32 s59, s30, 12")
    for p in range(16):
        if p % 2 == 0:
            a("s_and_b32 s59, s59, 0x7fff")
            a("s_add_u32 s40, s59, s53")
        a(f"buffer_load_dwordx4 {vr(KL+4*p,4)}, v1, {WS}, s40 offen offset:{(p&1)*2048} sc1")
        if p & 1 and p < 15: a("s_add_u32 s59, s59, 4096")

def wo_c(a, ks):
    for k in ks:
        a(f"s_add_u32 m0, s68, {5*8192 + k*4096}")
        a(f"s_add_u32 s40, s69, {(7*64 + k*32)*2048}")
        a("buffer_load_dwordx4 v205, s[4:7], s40 offen lds")

def gen_C_tail(a, vGD, vONE, vCV):
    a.label("F_CNB0")
    a(f"ds_write_b32 v{vGD}, v{vONE} offset:{L_G14 - L_GD}")
    lds_wait(a, "F_WS15", vCV, 15, sleep=0, off=L_S15 - L_M)
    a("s_branch F_CB0")
    a.label("F_CNB1")
    a(f"ds_write_b32 v{vGD}, v{vONE}")
    a("s_branch F_CB1")

def merge(groups, tail, extras):
    out = []; ex = list(extras)
    nd = sum(1 for g in groups for it in g if it[0] == 'ld')
    per = -(-len(ex) // max(nd, 1))
    def plain(e): return isinstance(e, tuple)
    for g in groups:
        for k, it in enumerate(g):
            out.append(it)
            last = (k == len(g) - 1)
            if it[0] == 'ld':
                for _ in range(per):
                    if ex and (plain(ex[0]) or last):
                        e = ex.pop(0)
                        if isinstance(e, list): out += e
                        else: out.append(e)
    out += tail
    for e in ex:
        if isinstance(e, list): out += e
        else: out.append(e)
    return out

def I(s): return ('i', s)
def mksrd(b, size):
    return [I(f"s_mov_b32 s40, s{b}"), I(f"s_mov_b32 s41, s{b+1}"), I(f"s_mov_b32 s42, {hex(size)}"), I("s_mov_b32 s43, 0x00020000")]

def gen_L(a, opt):
    NT = " nt" if opt.get("nt", 1) else ""
    a("s_sub_u32 s34, s3, 4")
    a("v_lshrrev_b32 v2, 3, v0")
    a("v_and_b32 v4, 7, v0")
    if opt.get("cpf", 1):
        a("s_getpc_b64 s[66:67]")
        a("F_PC:")
        a("s_lshl_b32 s40, s29, 10")
        a("s_lshl_b32 s41, s34, 8")
        a("s_add_u32 s40, s40, s41")
        a("v_and_b32 v7, 1, v0")
        a("v_lshlrev_b32 v7, 7, v7")
        a("v_add_u32 v7, s40, v7")
        a("v_min_u32 v7, F_END-F_PC, v7")
        a("global_load_dword v250, v7, s[66:67]")
    a("v_lshlrev_b32 v8, 11, v4")
    a("v_and_b32 v9, 15, v0")
    a("v_min_u32 v9, 11, v9")
    a("v_lshrrev_b32 v7, 2, v9")
    a("v_and_b32 v9, 3, v9")
    a("v_lshlrev_b32 v9, 7, v9")
    a("v_lshl_add_u32 v9, v7, 11, v9")
    a("s_and_b32 s100, s28, 1")
    a("s_lshr_b32 s101, s28, 1")
    a("s_lshl_b32 s40, s100, 21")
    a("s_lshl_b32 s41, s101, 19")
    a("s_add_u32 s99, s40, s41")
    a("s_lshl_b32 s40, s29, 14")
    a("s_lshl_b32 s41, s34, 7")
    a("s_add_u32 s42, s40, s41")
    a("s_add_u32 s42, s42, s99")
    a("s_mul_i32 s98, s100, 6144")
    a("s_lshl_b32 s41, s101, 9")
    a("s_add_u32 s98, s98, s41")
    a("s_lshl_b32 s43, s29, 2")
    a("s_add_u32 s43, s43, s34")
    a("s_mul_i32 s43, s43, 12288")
    a("s_add_u32 s43, s43, s98")
    if opt.get("map16", 1):
        a("v_min_u32 v9, 5, v4")
        a("v_lshrrev_b32 v7, 1, v9")
        a("v_and_b32 v9, 1, v9")
        a("v_lshlrev_b32 v9, 7, v9")
        a("v_lshl_add_u32 v19, v7, 11, v9")
        a("v_and_b32 v7, 1, v2")
        a("v_mul_u32_u24 v7, 6144, v7")
        a("v_add_u32 v9, v19, v7")
        a("s_lshl_b32 s98, s28, 8")
        a("s_lshl_b32 s43, s29, 2")
        a("s_add_u32 s43, s43, s34")
        a("s_mul_i32 s43, s43, 12288")
        a("s_add_u32 s43, s43, s98")
    a(f"s_mov_b32 s46, {hex(4 << 20)}")
    a("s_mov_b32 s47, 0x00020000")
    a(f"s_mov_b32 s50, {hex(6 << 20)}")
    a("s_mov_b32 s51, 0x00020000")
    a("s_lshl_b32 s40, s34, 3")
    a("v_add_u32 v3, s40, v2")
    a("v_lshrrev_b32 v5, 4, v0")
    a("s_and_b32 s40, s34, 1")
    a("s_lshl_b32 s41, s40, 2")
    a("v_add_u32 v6, s41, v5")
    a("v_xor_b32 v6, v6, v4")
    a("v_lshlrev_b32 v6, 4, v6")
    a("v_lshl_add_u32 v10, v3, 11, v6")
    a("v_and_b32 v6, 1, v5")
    a("v_lshlrev_b32 v6, 1, v6")
    a("v_or_b32 v6, s41, v6")
    a("v_xor_b32 v6, v6, v4")
    a("v_lshlrev_b32 v6, 4, v6")
    a("v_mul_u32_u24 v11, 6144, v3")
    a("v_add_u32 v11, v11, v6")
    a("s_lshl_b32 s52, s30, 18")
    for jj in range(1, 4): a(f"s_add_u32 s{52+jj}, s52, {jj*65536 - jj*1024}")
    a("s_lshl_b32 s56, s31, 7")
    Bp = [(0,0),(1,0),(2,0),(0,1),(1,1),(2,1)]
    for k, (seg, half) in enumerate(Bp):
        if k: a(f"s_add_u32 s{56+k}, s56, {seg*2048 + half*32*6144 - (k%4)*1024}")
    a(f"s_mul_i32 s62, s34, {WSEG}")
    a("s_mov_b32 s63, 393216")
    a("s_waitcnt lgkmcnt(0)")
    T(a, 9)
    a("s_mov_b64 s[44:45], s[4:5]")
    a("s_mov_b64 s[48:49], s[6:7]")
    if opt.get("pf0", 1):
        a("buffer_load_dword v250, v9, s[48:51], s43 offen")
        a("buffer_load_dword v250, v8, s[44:47], s42 offen")
    def stage(t):
        base = ((t + 1) % 3) * STAGE
        n = [0]
        def d(v, s, so, off):
            n[0] += 1
            return ('ld', 'vm', f"buffer_load_dwordx4 v{v}, {s}, s{so} offen offset:{off} lds", f"S{t}.{n[0]-1}")
        g1 = [I(f"s_add_u32 m0, s62, {base + 4096}")] + [d(11, "s[48:51]", 56+k, k*1024) for k in (1, 2, 0, 3)]
        g0 = [I(f"s_add_u32 m0, s62, {base}")] + [d(10, "s[44:47]", 52+jj, jj*1024) for jj in range(4)]
        g2 = [I(f"s_add_u32 m0, s62, {base + 8192}")] + [d(11, "s[48:51]", 56+k, (k-4)*1024) for k in (4, 5)]
        return [g1, g0, g2], [I("v_add_u32 v10, 128, v10"), I("v_add_u32 v11, s63, v11")]
    def tags(t): return [f"S{t}.{n}" for n in range(10)]
    pro = merge(*stage(0), []) + ([] if opt.get("b0early", 0) else merge(*stage(1), []))
    for it in pro: a(it[1] if it[0] == 'i' else it[2])
    T(a, 8)
    common2(a)
    prolist = [(it[1], it[3]) for it in pro if it[0] == 'ld']
    a("v_lshlrev_b32 v6, 1, v5")
    a("v_xor_b32 v6, v6, v4")
    a("v_lshlrev_b32 v6, 4, v6")
    a("v_lshl_add_u32 v12, v2, 11, v6")
    a("v_mov_b32 v13, 0")
    a("s_lshr_b32 s35, s29, 4")
    a("s_lshl_b32 s35, s35, 3")
    a("s_add_u32 s35, s35, s28")
    a("s_lshl_b32 s35, s35, 4")
    a("s_and_b32 s40, s29, 15")
    a("s_add_u32 s35, s35, s40")
    if not opt.get("cgx", 0): a("s_mov_b32 s35, s2")
    a("s_lshl_b32 s35, s35, 2")
    a("s_add_u32 s35, s35, s34")
    a("s_and_b32 s96, s29, 3")
    a("s_waitcnt lgkmcnt(0)")
    srd(a, 36, 26, WS_SIZE)
    srd(a, 64, 24, 256)

    ex = {t: [] for t in range(-2, 17)}
    bdep = {t: [] for t in range(0, 17)}
    tT = opt.get("tT", 5)
    ex[tT].append(('ld', 'vm', "buffer_load_dword v14, v13, s[64:67], 0 offen sc1", "TOK"))
    ex[tT+2].append([('use', "v_readfirstlane_b32 s68, v14", ["TOK"]), I("s_mov_b32 s69, 0"),
         I("F_TK:"), I("s_cmp_ge_u32 s68, 4"), I("s_cbranch_scc1 F_TKX"), I("s_sleep 8"),
         I("buffer_load_dword v14, v13, s[64:67], 0 offen sc1"), I("s_waitcnt vmcnt(0)"), I("v_readfirstlane_b32 s68, v14"),
         I("s_add_u32 s69, s69, 1"), I(f"s_cmp_lt_u32 s69, {SPIN_MAX}"), I("s_cbranch_scc1 F_TK"), I("F_TKX:")])
    if opt.get("pf", 1):
        ex[-2] = [I(x) for x in ["s_lshr_b32 s69, s29, 2",
              "s_mul_i32 s40, s96, 3", "s_add_u32 s40, s40, 4",
              "s_add_u32 s41, s40, s34", "s_lshl_b32 s41, s41, 7", "s_add_u32 s99, s99, s41", "s_lshl_b32 s41, s69, 16", "s_add_u32 s99, s99, s41",
              "s_lshl_b32 s40, s40, 5", "s_mul_i32 s41, s69, 12", "s_add_u32 s40, s40, s41", "s_lshl_b32 s41, s34, 2", "s_add_u32 s40, s40, s41",
              "s_mul_i32 s40, s40, 12288", "s_add_u32 s98, s98, s40",
              "s_lshl_b32 s100, s100, 10", "s_lshl_b32 s101, s101, 19", "s_add_u32 s100, s100, s101", "s_lshl_b32 s41, s29, 14", "s_add_u32 s100, s100, s41",
              "v_and_b32 v16, 31, v0", "v_lshlrev_b32 v16, 11, v16", "v_mul_u32_u24 v17, 6144, v2" if opt.get("map16", 1) else "v_mul_u32_u24 v17, 12288, v5", "v_add_u32 v17, v17, v19" if opt.get("map16", 1) else "v_add_u32 v17, v17, v9",
              "v_lshlrev_b32 v18, 7, v4", "v_lshl_add_u32 v18, v2, 11, v18"]] + ex[-2]
        if opt.get("spf"):
            G.spf = True
        for sg, t in enumerate(opt.get("pft", (-2, -1, 3, 6)) if not opt.get("spf") else ()):
            ex[t].append([I(f"s_cmp_lg_u32 s96, {sg}"), I(f"s_cbranch_scc1 F_PF{sg}X"), I("s_cmp_eq_u32 s34, 3"), I(f"s_cbranch_scc1 F_PF{sg}X"),
                          I("buffer_load_dword v250, v17, s[48:51], s98 offen"), I("buffer_load_dword v250, v16, s[44:47], s99 offen"), I(f"F_PF{sg}X:")])
        for sg, t in enumerate(opt.get("wot", (-2, -1, 3, 6))):
            ex[t].append([I(f"s_cmp_lg_u32 s96, {sg}"), I(f"s_cbranch_scc1 F_PW{sg}X"), I("s_cmp_lg_u32 s34, 3"), I(f"s_cbranch_scc1 F_PW{sg}X")] + mksrd(8, 2 << 20) +
                         [I("buffer_load_dword v250, v18, s[40:43], s100 offen"), I(f"F_PW{sg}X:")])
    tC = opt.get("tC", 4); chunk = opt.get("chunk", 52)
    W8 = 32; WF = 36; KF = 44; VFp = 64; U = 80; UN = 96
    ex[-2] += [I("s_lshl_b32 s40, s34, 1"), I("v_xor_b32 v20, s40, v4"), I("v_lshlrev_b32 v20, 4, v20"), I("v_lshl_add_u32 v20, v2, 11, v20"),
               I("s_lshr_b32 s40, s2, 4"), I("s_lshl_b32 s40, s40, 18"), I("s_and_b32 s41, s2, 15"), I("s_lshl_b32 s41, s41, 7"), I("s_add_u32 s40, s40, s41"),
               I("v_xor_b32 v21, 6, v4"), I("v_lshlrev_b32 v21, 4, v21"), I("v_lshl_add_u32 v21, v2, 11, v21"), I("v_add_u32 v21, s40, v21"), I("v_subrev_u32 v21, 6144, v21"),
               I("s_lshl_b32 s41, s34, 15"), I("s_add_u32 s40, s40, s41"), I("v_add_u32 v20, s40, v20"),
               I("v_and_b32 v22, 3, v2"), I("v_xor_b32 v22, s34, v22"), I("v_lshlrev_b32 v22, 5, v22"), I("v_lshl_add_u32 v22, v4, 2, v22"), I("v_lshl_add_u32 v22, v2, 11, v22"), I(f"v_add_u32 v22, {L_K}, v22"),
               I("v_add_u32 v23, 3, v2"), I("v_and_b32 v23, 3, v23"), I("v_xor_b32 v23, s34, v23"), I("v_lshlrev_b32 v23, 5, v23"), I("v_lshl_add_u32 v23, v4, 2, v23"), I("v_lshl_add_u32 v23, v2, 11, v23"), I(f"v_add_u32 v23, {L_K - 384}, v23"),
               I("s_and_b32 s40, s2, 15"), I("s_lshl_b32 s40, s40, 6"), I("s_lshl_b32 s41, s34, 4"), I("s_add_u32 s40, s40, s41"),
               I("v_lshlrev_b32 v24, 1, v4"), I("v_add_u32 v24, s40, v24"),
               I(f"v_mul_u32_u24 v25, {CP}, v24"), I("v_lshlrev_b32 v24, 3, v24"),
               I("s_lshr_b32 s40, s2, 4"), I("s_lshl_b32 s40, s40, 3"), I("v_add_u32 v26, s40, v2"), I("v_lshl_add_u32 v25, v26, 4, v25")]
    ex[2 if opt.get("lateset", 1) else -2] += [I(f"v_mov_b32 v{r}, 0") for r in range(KF, U)]
    tmp = Asm(); handoff_addrs_L(tmp)
    ex[0] += [I("s_mov_b32 s7, 0xffff0000")]
    for sg, t in enumerate(opt.get("kvt", (0, 1, -1, 1))):
        g = [I(f"s_cmp_lg_u32 s96, {sg}"), I(f"s_cbranch_scc1 F_KV{sg}X"), I("s_lshl_b32 s69, s34, 11")]
        for which, (ptr, lb) in enumerate(((12, L_K), (14, L_V))):
            g += mksrd(ptr, 4 << 20)
            if which == 0:
                g += [I(f"s_mov_b32 m0, {L_KH}"), I("s_mov_b64 exec, 0xffffff"), I(f"buffer_load_dwordx4 v21, s[40:43], 0 offen{NT} lds"), I("s_mov_b64 exec, -1")]
            for hf in range(2):
                g += [I(f"s_add_u32 m0, s69, {lb + hf*8192}"), I(f"s_mov_b32 s97, {hf*131072}"),
                      I(f"buffer_load_dwordx4 v20, s[40:43], s97 offen{NT} lds"), I(f"s_mov_b32 s97, {hf*131072 + 16384 - 1024}"),
                      I(f"buffer_load_dwordx4 v20, s[40:43], s97 offen offset:1024{NT} lds")]
        g += mksrd(16, 8192) + [I(f"buffer_load_dwordx4 {vr(W8,4)}, v24, s[40:43], 0 offen"), I(f"F_KV{sg}X:")]
        if not opt.get("cheat"): ex[t] += [[]]*2 + [g]
        assert t + 3 <= tC
    L = []
    for cc in range(2):
        rd = [('ld', 'lgkm', f"ds_read_u16_d16_hi v{KF+r}, v{23 if r < 3 else 22} offset:{(r if r < 3 else r-3)*128 + cc*2}", f"k{r}") for r in range(19)]
        rv = [('ld', 'lgkm', f"ds_read_u16_d16_hi v{VFp+r}, v22 offset:{16384 + r*128 + cc*2}", f"v{r}") for r in range(16)]
        L += rd[:12]
        for j in range(4):
            src = W8 + 2*cc + (j >> 1)
            L.append(I(f"v_and_b32 v{WF+j}, s7, v{src}" if j & 1 else f"v_lshlrev_b32 v{WF+j}, 16, v{src}"))
        rest = rd[12:] + rv
        for s in range(16):
            L.append(('use', f"v_mul_f32 v{U+s}, v{WF+3}, v{KF+s}", [f"k{min(s+7, 18)}" if s % 8 == 0 else f"k{s}"]))
            if rest: L.append(rest.pop(0))
        for j in (2, 1, 0):
            for s in range(16):
                L.append(('use', f"v_fmac_f32 v{U+s}, v{WF+j}, v{KF+s+3-j}", ["k18"]))
                if rest: L.append(rest.pop(0))
        for s in range(16): L.append(('use', f"v_mul_f32 v{U+s}, v{U+s}, v{VFp+s}", ["v15"]))
        for rho in range(2):
            for i, (lo, hi) in enumerate(((12, 8), (4, 0), (14, 10), (6, 2))):
                L.append(I(f"v_cvt_pk_bf16_f32 v{UN+8*cc+4*rho+i}, v{U+lo+rho}, v{U+hi+rho}"))
    g = []
    for cc in range(2):
        g.append(I(f"s_mov_b32 s69, {hex(WS_UT + cc*CP)}"))
        for rho in range(2):
            g.append(('ld', 'vm', f"buffer_store_dwordx4 {vr(UN+8*cc+4*rho,4)}, v25, {WS}, s69 offen offset:{rho*2048} sc1", f"us{cc}.{rho}"))
    if not opt.get("ulate"): L.append(g)
    gU = g
    def cond(name, times, items):
        for sg, t in enumerate(times):
            ex[t] += [[]]*2 + [[I(f"s_cmp_lg_u32 s96, {sg}"), I(f"s_cbranch_scc1 F_{name}{sg}X")] + [I(x.replace("@", f"F_{name}{sg}X")) for x in items] + [I(f"F_{name}{sg}X:")]]
    clr = [f"buffer_store_dwordx4 v[112:115], v1, {WS}, s4 offen sc1", "s_mov_b32 exec_lo, 0x00010001", "s_mov_b32 exec_hi, 0x00010001",
           f"buffer_store_dwordx4 v[112:115], v27, {WS}, s5 offen sc1", "s_mov_b64 exec, -1"]
    for i in range(4):
        clr.append(f"buffer_store_dwordx4 v[112:115], v1, {WS}, s6 offen sc1")
        if i < 3: clr.append(f"s_add_u32 s6, s6, {OP}")
    clr += [f"s_mul_i32 s69, s35, {CP}", f"s_add_u32 s69, s69, {hex(WS_YT)}"]
    for ip in range(4): clr.append(f"buffer_store_dwordx4 v[112:115], v1, {WS}, s69 offen offset:{ip*1024} sc1")
    if False: cond("CL", opt.get("clt", (3, 5, 1, 2)), clr)
    ex[-2] += [I(x) for x in ["s_lshr_b32 s40, s2, 4", "s_lshl_b32 s40, s40, 4", "s_lshl_b32 s41, s34, 3", "s_add_u32 s40, s40, s41",
        "v_add_u32 v28, s40, v2", f"v_mul_u32_u24 v232, {8*CP}, v4", "v_lshl_add_u32 v232, v28, 4, v232", "v_lshrrev_b32 v29, 6, v28", "v_lshlrev_b32 v29, 9, v29",
        "v_and_b32 v30, 15, v28", "v_lshl_add_u32 v29, v30, 4, v29", "v_bfe_u32 v30, v28, 4, 2", "v_lshl_add_u32 v29, v30, 2, v29", "v_lshlrev_b32 v30, 4, v4",
        "v_lshl_add_u32 v234, v29, 11, v30", "v_lshl_add_u32 v233, v29, 12, v30"]]
    ql = ["s_cmp_ge_u32 s34, 2", "s_cbranch_scc1 @"] + [x[1] for x in mksrd(10, 4 << 20)] + ["s_and_b32 s69, s2, 15", "s_lshl_b32 s69, s69, 7"]
    for j in range(8):
        hf, r = j >> 2, j & 3
        ql.append(f"s_add_u32 s97, s69, {(r>>1)*4096 + hf*256*2048}")
        ql.append(f"buffer_load_dwordx4 {vr(QREG+4*j,4)}, v234, s[40:43], s97 offen offset:{(r&1)*2048}{NT}")
    G.ql = ql
    if not opt.get("qlate", 2): cond("Q", opt.get("qt", (1, 1, -1, 0)), ql)
    t = tC
    for i in range(0, len(L), chunk):
        if not opt.get("cheat"): ex[t] += L[i:i+chunk]
        t += 1
    tLast = t - 1
    tB = tLast + 1 + opt.get("fad", 2)
    assert tB <= 13, tB
    tmp = Asm(); tmp("s_and_b32 s69, s2, 15"); tmp("s_lshl_b32 s69, s69, 2"); tmp("s_add_u32 s69, s69, s34"); ctr_addr(tmp, 4, 69, CT_U); tmp("s_mov_b32 s6, 1")
    if not opt.get("ulate"):
        ex[tB-1] = [[I(l) for l in tmp.lines] + [('use', "s_atomic_add s6, s[4:5], 0", ["us1.1"])]] + ex[tB-1]
    gA = [I(l) for l in tmp.lines] + [('use', "s_atomic_add s6, s[4:5], 0", ["us1.1"]), I("s_waitcnt lgkmcnt(0)")]
    ht = opt.get("ht", (9, 10, 11, 12))
    assert min(ht) > tLast and min(ht) > max(opt.get("pft", (-2, -1, 3, 6)))
    ex[min(ht)] = [I("s_lshl_b32 s98, s35, 12"), I(f"s_mul_i32 s99, s34, {HSZ}"), I(f"s_add_u32 s99, s99, {L_H}")] + ex[min(ht)]
    hd = [x[1] for x in mksrd(18, 4 << 20)]
    for j in range(4):
        hd += ["s_add_u32 m0, s99, 32", f"buffer_load_dwordx4 v1, s[40:43], s98 offen offset:{j*1024} lds",
               f"s_add_u32 m0, s99, {H1+36}", f"buffer_load_dwordx4 v1, s[40:43], s98 offen offset:{j*1024} lds"]
    if not opt.get("hlate", 1): cond("H", ht, hd)
    cs = conv_setup()
    ex[12] += [[I(x) for x in cs[:8]]] + [I(x) for x in cs[8:]]
    ex[11] += [I(f"v_mov_b32 v{116+i}, 0") for i in range(44)]
    if opt.get("ulate"):
        if opt["ulate"] == 1:
            ex[12] += [gU]
            G.ulate = gA + [I(f"v_mov_b32 v{96+i}, 0") for i in range(20)]
        else:
            G.ulate = gU + gA[:-2]
    else:
        ex[10] += [I(f"v_mov_b32 v{96+i}, 0") for i in range(20)]
    ex[13] += [I("s_lshl_b32 s97, s34, 2"), I(f"s_add_u32 s97, s97, {L_S15}"), I("v_mov_b32 v28, s97"), I("v_mov_b32 v29, 1"),
               ('use', "ds_write_b32 v28, v29", tags(15))]
    if opt.get("ulate"): ex[13] += G.ulate
    if opt.get("hlate", 1) and not opt.get("aonly"): ex[13] += [I(x) for x in hd]
    if opt.get("qlate", 2) == 2: ex[13] += [I(x.replace("@", "F_QL2")) for x in ql] + [I("F_QL2:")]
    if opt.get("spf"):
        rest = spf_list(22, 98, 92, 97)[opt.get("spc", 18):]
        ex[-2].append([I(x) for x in ["s_mov_b64 s[94:95], s[22:23]" if False else "s_nop 0"] + spf_setup(34, 90, 98, 40, 41)])
        rest = spf_list(90, 98, 88, 97)[opt.get("spc", 18):]
        slots = opt.get("sps", (-2, -1, 0, 1, 2, 3)); per = -(-len(rest) // len(slots))
        for k, t in enumerate(slots):
            ex[t] += [[]]*3 + [[I(x) for grp in rest[k*per:(k+1)*per] for x in grp]]
    if opt.get("b0early", 0):
        g, tl = stage(1)
        nb0 = opt.get("nb0", 1)
        plain_ = [e for e in ex[-2] if isinstance(e, tuple)]; grp_ = [e for e in ex[-2] if isinstance(e, list)]
        k = opt.get("k0", 60)
        body = merge(g[:nb0], [], plain_[:k]) + [('use', "s_barrier", tags(0))] + merge(g[nb0:], tl, plain_[k:] + grp_) + merge(*stage(2), ex[-1])
    else:
        body = merge([], [], ex[-2]) + [('use', "s_barrier", tags(0))] + merge(*stage(2), ex[-1])
    for t in range(14):
        body.append(('use', "s_barrier", tags(t+1) + bdep[t+1]))
        if t + 3 <= 15: body += merge(*stage(t+3), ex[t])
        else: body += merge([], [], ex[t])
    lines = insert_waits(prolist, body, loop=False)
    nb = 0
    for l in lines:
        if l == "s_barrier" and G.stamp:
            a("s_memrealtime s[72:73]"); a("s_waitcnt lgkmcnt(0)"); a(f"v_writelane_b32 v240, s72, {nb}")
            a(l)
            a("s_memrealtime s[72:73]"); a("s_waitcnt lgkmcnt(0)"); a(f"v_writelane_b32 v240, s72, {32+nb}")
            nb += 1
        else:
            a(l)
    if opt.get("g1only"):
        stamp_out(a); a("s_endpgm"); return
    gen_conv(a, opt)

def conv_setup():
    a = Asm()
    vA, vB = 6, 7; ACC = 96
    a("s_add_u32 s4, s18, s98")
    a("s_addc_u32 s5, s19, 0")
    a("s_load_dword s6, s[4:5], 0")
    a("s_lshl_b32 s7, s35, 1")
    a("s_and_b32 s7, s7, 0xfffffffc")
    a("s_add_u32 s4, s20, s7")
    a("s_addc_u32 s5, s21, 0")
    a("s_load_dword s7, s[4:5], 0")
    a(f"s_mul_i32 s97, s34, {USZ}")
    a(f"s_add_u32 s97, s97, {L_U}")
    a("v_add_u32 v32, s97, v1")
    a(f"v_add_u32 v33, {URHO-256}, v32")
    a("v_cmp_gt_u32 vcc, 16, v0")
    a("v_and_b32 v34, 1, v0")
    a("v_lshlrev_b32 v34, 4, v34")
    a("v_cndmask_b32 v32, v33, v32, vcc")
    a("v_bfe_u32 v35, v0, 1, 1")
    a(f"v_mul_u32_u24 v35, {H1}, v35")
    a("v_cmp_gt_u32 vcc, 32, v0")
    a("v_add3_u32 v34, v34, v35, s99")
    for i in range(4): a(f"v_mov_b32 v{36+i}, 0")
    a("v_cndmask_b32 v32, v34, v32, vcc")
    a("v_and_b32 v34, 3, v0")
    a("v_lshlrev_b32 v30, 2, v34")
    a(f"v_add_u32 v30, {L_M}, v30")
    a("v_bfe_u32 v35, v0, 2, 2")
    a("v_add_u32 v34, v34, v35")
    a("v_lshlrev_b32 v34, 3, v34")
    a("v_lshl_add_u32 v34, v5, 5, v34")
    a("s_add_u32 s69, s99, 8")
    a(f"v_add_u32 v{vA}, s69, v34")
    a("v_and_b32 v34, 15, v0")
    a("v_sub_u32 v34, v34, v5")
    a("v_lshlrev_b32 v34, 4, v34")
    a(f"s_add_u32 s69, s97, {256-64}")
    a(f"v_add_u32 v{vB}, s69, v34")
    a("v_mov_b32 v5, s99")
    a("v_subrev_u32 v8, 16, v0")
    a("v_add_u32 v9, 47, v0")
    a("v_cmp_gt_u32 vcc, 16, v0")
    a("v_mov_b32 v34, 63")
    a("s_lshl_b32 s69, s34, 2")
    a("v_cndmask_b32 v8, v8, v9, vcc")
    a("v_cmp_eq_u32 vcc, 0, v0")
    a(f"s_add_u32 s69, s69, {L_CV}")
    a("v_mov_b32 v9, s69")
    a("v_cndmask_b32 v8, v8, v34, vcc")
    a("v_lshlrev_b32 v8, 2, v8")
    a("s_waitcnt lgkmcnt(0)")
    a("s_lshl_b32 s6, s6, 16")
    a("s_and_b32 s69, s35, 1")
    a("s_lshl_b32 s69, s69, 4")
    a("s_lshr_b32 s7, s7, s69")
    a("s_lshl_b32 s7, s7, 16")
    a("v_mov_b32 v33, s6")
    a("v_add_f32 v33, s7, v33")
    a("v_cvt_pk_bf16_f32 v33, v33, v33")
    return a.lines

def handoff_addrs_L(a):
    t = Asm(); handoff_addrs(t, 34, 4)
    import re
    for l in t.lines: a(re.sub(r"\bs8\b", "s69", l))

def gen_conv(a, opt):
    NT = " nt" if opt.get("nt", 1) else ""
    T(a, 1)
    vA, vB = 6, 7
    AF = 16; BF = 48; ACC = 96
    a(f"s_mul_i32 s52, s34, {USZ}")
    a(f"s_add_u32 s52, s52, {L_U}")
    a(f"s_mul_i32 s63, s35, {CP}")
    a(f"s_add_u32 s53, s63, {hex(WS_UT)}")
    srd(a, 40, 8, 2 << 20)
    a("s_lshl_b32 s62, s34, 10")
    a("s_lshl_b32 s100, s34, 14")
    a("s_lshl_b32 s101, s33, 7")
    a("s_add_u32 s100, s100, s101")
    def woc(chs):
        for c in chs:
            for hf in range(2):
                a(f"s_add_u32 m0, s62, {c*8192 + hf*4096}")
                a(f"s_add_u32 s101, s100, {(((c+2)%12)*64 + hf*32)*2048}")
                a("buffer_load_dwordx4 v12, s[40:43], s101 offen lds")
    UL = opt.get("ulate", 0)
    def ublock():
        a("s_lshr_b32 s69, s35, 4")
        ctr_addr(a, 54, 69, CT_U)
        ctr_wait(a, "F_P1", 54, 69, 16, 101, sleep=4)
        T(a, 5)
        a("s_add_u32 m0, s52, 256")
        for j in range(2): a(f"buffer_load_dwordx4 v1, {WS}, s53 offen offset:{j*1024} sc1 lds")
        a(f"s_add_u32 m0, s52, {URHO+256-2048}")
        for j in range(2, 4): a(f"buffer_load_dwordx4 v1, {WS}, s53 offen offset:{j*1024} sc1 lds")
    if UL == 2:
        a("s_waitcnt vmcnt(8)")
        a("s_atomic_add s6, s[4:5], 0")
        for i in range(20): a(f"v_mov_b32 v{96+i}, 0")
    if UL != 2: ublock()
    a("ds_write_b128 v32, v[36:39]")
    a(f"ds_write_b32 v5, v36 offset:{H1+32}")
    woc((10, 11))
    lds_wait(a, "F_WG14", 30, 11, off=L_G14 - L_M)
    WL = opt.get("wloop", 0)
    woc(range(0, 2) if WL else range(0, 5))
    if UL == 2 and opt.get("upos", 0) == 0: ublock()
    WM = opt.get("wmid", 0)
    if WL:
        lds_wait(a, "F_WGDx", 30, 11, off=L_GD - L_M)
        a("s_add_u32 s56, s62, 16384")
        a(f"s_add_u32 s57, s100, {4*64*2048}")
    elif not WM:
        lds_wait(a, "F_WGDx", 30, 11, off=L_GD - L_M)
        woc(range(5, 10))
    else:
        a("v_mov_b32 v235, v30")
    if UL == 2 and opt.get("upos", 0) == 1: ublock()
    if opt.get("cvdel", 0): a(f"s_sleep {opt.get('cvdel', 8)}")
    a(f"s_waitcnt vmcnt({(8 if WL else 14 if WM else 24) if UL != 2 else (10 if opt.get('upos', 0) == 0 else 0)})")
    a("ds_write_b16 v5, v33 offset:32")
    a(f"ds_write_b16 v5, v33 offset:{H1+36}")
    if opt.get("qlate", 2) == 1:
        for x in G.ql: a(x.replace("@", "F_QLX").replace("s[40:43]", "s[44:47]").replace("s40,", "s44,").replace("s41,", "s45,").replace("s42,", "s46,").replace("s43,", "s47,"))
        a.label("F_QLX")
    T(a, 2)
    def ldA(nu, nxt):
        return [('ld', 'lgkm', f"ds_read_b64_tr_b16 {vr(AF+4*nu+2*jh,2)}, v{vA} offset:{jh*H1 + nu*512 + 128*nxt}", f"A{nu}.{jh}") for jh in range(2)]
    def bslot(rho, x): return 8 if (rho == 1 and x == 0) else x
    def ldB(rho, x, nxt):
        s = bslot(rho, x)
        return [('ld', 'lgkm', f"ds_read_b128 {vr(BF+4*s,4)}, v{vB} offset:{rho*URHO + x*256 + 64*(1-nxt)}", f"B{s}")]
    def mf(rho, nu, x):
        d = ACC + 32*rho + 4*(nu + x); s = bslot(rho, x)
        return ('use', f"v_mfma_f32_16x16x32_bf16 {vr(d,4)}, {vr(AF+4*nu,4)}, {vr(BF+4*s,4)}, {vr(d,4)}", [f"A{nu}.0", f"A{nu}.1", f"B{s}"])
    pro = []
    for k in range(8): pro += ldB(0, 7-k, 0) + ldA(k, 0)
    for it in pro: a(it[2])
    a("v_mov_b32 v10, 1")
    a("s_mov_b64 s[60:61], 1")
    body = []; pend = []; cnt = [0]
    def emit(m, after):
        body.append(m); pend.extend(after); cnt[0] += 1
        if WL and cnt[0] % 9 == 4:
            pend.extend([I("s_mov_b32 m0, s56"), I("s_add_u32 s56, s56, s59"), I("buffer_load_dwordx4 v12, s[40:43], s57 offen lds"), I("s_add_u32 s57, s57, 65536")])
        for _ in range(2):
            if pend: body.append(pend.pop(0))
    first = True
    for x in range(7, -1, -1):
        for nu in range(0, 8 - x):
            after = []
            if first: after += ldB(1, 0, 0); first = False
            if nu == 7 - x and x >= 1: after += ldB(1, x, 0)
            emit(mf(0, nu, x), after)
    first = True
    for nu in range(8):
        for x in range(7 - nu, -1, -1):
            after = []
            if first: after += ldB(0, 0, 1); first = False
            if x == 7 - nu and x >= 1: after += ldB(0, x, 1)
            if x == 0: after += ldA(nu, 1)
            emit(mf(1, nu, x), after)
    while pend: body.append(pend.pop(0))
    lines = insert_waits([(it[1], it[3]) for it in pro], body)
    a("s_mov_b32 s58, 0")
    a("s_movk_i32 s59, 4096")
    a(".p2align 6")
    a.label("F_VLOOP")
    for l in lines: a(l)
    if WM:
        a("s_cmp_eq_u32 s58, 0")
        a("s_cbranch_scc1 F_VW")
    elif opt.get("ew2", 0):
        a("s_cmp_eq_u32 s58, 0")
        a("s_cbranch_scc1 F_VWX")
    if WL:
        a("s_waitcnt vmcnt(8)")
        a(f"ds_write_b32 v9, v10 offset:{L_EW - L_CV}")
        a("s_cmp_lt_u32 s58, 1")
        a("s_cbranch_scc1 F_VWX")
        a("s_mov_b32 s42, 0")
        a(f"s_mov_b32 s56, {L_X0 + 2*XSZ}")
        a("s_mov_b32 s59, 0")
        a("s_cmp_lt_u32 s58, 2")
        a("s_cbranch_scc1 F_VWX")
        a(f"ds_write_b32 v9, v10 offset:{L_EC - L_CV}")
    else:
        a("s_waitcnt vmcnt(0)")
        a(f"ds_write_b32 v9, v10 offset:{L_EW - L_CV}")
    a.label("F_VWX")
    a(f"v_add_u32 v{vA}, 128, v{vA}")
    a(f"v_subrev_u32 v{vB}, 64, v{vB}")
    a("s_add_u32 s58, s58, 1")
    a("s_cmp_lt_u32 s58, 4")
    a("s_cbranch_scc1 F_VLOOP")
    T(a, 3)
    if WL: a(f"s_mov_b32 s42, {hex(2 << 20)}")
    a("s_waitcnt lgkmcnt(0)")
    a("ds_write_b32 v9, v10")
    P = 16
    for i in range(8): a(f"ds_bpermute_b32 v{P+1+i}, v8, v{ACC+32+4*i+3}")
    a(f"v_mov_b32 v{P}, 0")
    for i in range(8):
        for r in range(1, 4): a(f"v_add_f32 v{ACC+4*i+r}, v{ACC+4*i+r}, v{ACC+32+4*i+r-1}")
    a("s_waitcnt lgkmcnt(0)")
    for i in range(8): a(f"v_cndmask_b32 v{P+12+i}, v{P+1+i}, v{P+i}, s[60:61]")
    for i in range(8): a(f"v_add_f32 v{ACC+4*i}, v{ACC+4*i}, v{P+12+i}")
    Y = 48
    for i in range(8):
        a(f"v_cvt_pk_bf16_f32 v{Y+2*i}, v{ACC+4*i}, v{ACC+4*i+1}")
        a(f"v_cvt_pk_bf16_f32 v{Y+2*i+1}, v{ACC+4*i+2}, v{ACC+4*i+3}")
    a(f"s_add_u32 s53, s63, {hex(WS_YT)}")
    for ip in range(4): a(f"buffer_store_dwordx4 {vr(Y+4*ip,4)}, v1, {WS}, s53 offen offset:{ip*1024} sc1")
    a("s_lshr_b32 s69, s35, 6")
    ctr_addr(a, 4, 69, CT_Y)
    a("s_mov_b32 s69, 1")
    a("s_cmp_ge_u32 s34, 2")
    a("s_cbranch_scc0 F_POST")
    a("v_and_b32 v9, 3, v0")
    a("v_lshlrev_b32 v9, 2, v9")
    a("v_and_b32 v11, 4, v0")
    a("v_lshl_add_u32 v9, v11, 3, v9")
    a(f"v_add_u32 v9, {L_CV}, v9")
    lds_wait(a, "F_WL", 9, 11)
    T(a, 4)
    a(f"s_add_u32 s62, s62, {98304 - 2048}")
    a(f"s_add_u32 s100, s100, {24*65536 - 32768}")
    for k in range(16):
        a(f"s_add_u32 m0, s62, {k*2048}")
        a(f"s_add_u32 s101, s100, {k*32768}")
        a("buffer_load_dwordx4 v12, s[40:43], s101 offen lds")
    T(a, 6)
    a("s_waitcnt vmcnt(16)")
    a("s_atomic_add s69, s[4:5], 0")
    a("s_lshl_b32 s58, s34, 2")
    a(f"s_add_u32 s58, s58, {L_CV + 8}")
    a("v_mov_b32 v9, s58")
    a("s_waitcnt vmcnt(0)")
    T(a, 10)
    a("ds_write_b32 v9, v10")
    a("s_waitcnt lgkmcnt(0)")
    stamp_out(a)
    a("s_endpgm")
    if WM:
        a.label("F_VW")
        lds_wait(a, "F_WGDx", 235, 11, off=L_GD - L_M)
        woc(range(5, 10))
        a("s_branch F_VWX")
    a.label("F_POST")
    a("s_and_b32 s52, s2, 15")
    a("s_lshl_b32 s56, s52, 7")
    T(a, 4)
    a(f"s_mul_i32 s53, s52, {64*CP}")
    a(f"s_add_u32 s53, s53, {hex(WS_YT)}")
    YY = 48; TT = 80; O = 100
    srd(a, 44, 22, 8 << 20)
    a("s_mov_b32 s55, 0xffff0000")
    a("s_add_u32 s56, s56, 2048")
    a("s_waitcnt vmcnt(0)")
    a("s_atomic_add s69, s[4:5], 0")
    QU = 132
    for j in range(8):
        for c in range(8):
            qs = QREG + 4*j + (c >> 1)
            a(f"v_and_b32 v{QU+8*j+c}, s55, v{qs}" if c & 1 else f"v_lshlrev_b32 v{QU+8*j+c}, 16, v{qs}")
    ctr_addr(a, 6, 52, CT_Y)
    ctr_wait(a, "F_P4", 6, 54, 64, 101, sleep=opt.get("sl4", 16))
    T(a, 6)
    for c in range(8):
        a(f"buffer_load_dwordx4 {vr(YY+4*c,4)}, v232, {WS}, s53 offen sc1")
        if c < 7: a(f"s_add_u32 s53, s53, {CP}")
    a("s_waitcnt vmcnt(0)")
    T(a, 7)
    for j in range(8):
        hf, r = j >> 2, j & 3
        for c in range(8):
            qs = QREG + 4*j + (c >> 1); ys = YY + 4*c + (j >> 1)
            a(f"v_and_b32 v{TT+8+c}, s55, v{ys}" if j & 1 else f"v_lshlrev_b32 v{TT+8+c}, 16, v{ys}")
        for c in range(8): a(f"v_mul_f32 v{TT+c}, v{QU+8*j+c}, v{TT+8+c}")
        for m in range(4): a(f"v_cvt_pk_bf16_f32 v{O+4*j+m}, v{TT+2*m}, v{TT+2*m+1}")
        a(f"s_add_u32 s57, s56, {r*4096 + hf*256*4096}")
        a(f"buffer_store_dwordx4 {vr(O+4*j,4)}, v233, s[44:47], s57 offen{OUTB}")
    stamp_out(a)
    a("s_endpgm")

NAME = "concat_heads__linear_attn_block__ssm_conv_h3__prompt"
def build(path, stamp=False, opt=None, verbose=False):
    a = gen(stamp=stamp, opt=opt); a.fix_hazards(verbose=verbose)
    hdr = ["generated by tools/f4.py (hand-written generator): single persistent launch, 256 workgroups x 8 waves",
           "waves 0-3: qkv GEMM -> kv/z partials -> o -> out GEMM ; waves 4-7: LDS-DMA loaders, H3 pre-pass, Toeplitz long conv, gating"]
    txt = make_file(hdr, [(None, (256,1,1), (512,1,1), LDS_TOTAL)], [(NAME + "_kernel", a, {})])
    open(path, "w").write(txt)

def parse_opt(args):
    opt = {}
    for x in args:
        k, v = x.split("=")
        opt[k] = tuple(int(y) for y in v.split(",")) if "," in v else int(v)
    return opt

if __name__ == "__main__":
    import sys
    name = sys.argv[1] if len(sys.argv) > 1 else "f4"
    opt = parse_opt(sys.argv[2:])
    build(f"mb/{name}.s", opt=opt, verbose=(len(sys.argv) == 1))
    build(f"mb/{name}_stamp.s", stamp=True, opt=opt)
```

```python
from asmlib import *
from sched import insert_waits

WS_KVP = 0
WS_ZP = 1 << 20
WS_FA = WS_ZP + 65536
WS_FC = WS_FA + 2048
WS_F4 = WS_FA + 4096
WS_CT = WS_ZP + 131072
CT_U, CT_P, CT_O, CT_Y = 0, 64, 128, 160
WS_O = 2 << 20
WS_UT = 7 << 20
WS_YT = 12 << 20
OP = 33 * 1024
CP = 4096 + 128
WS_ST = 20 << 20
WS_SIZE = 0x10000000
LOG2E = 0x3fb8aa3b
EPS = 0x358637bd
STAGE = 40960
WSEG = 10240
L_U = 98304; URHO = 2304; USZ = 4608
L_X2 = L_U + 4 * USZ
L_H = 122880; H1 = 4160; HSZ = 8320
L_KH = L_H
L_K = L_H + 384
L_V = L_K + 16384
L_M = L_H + 4 * HSZ
L_FLG = L_M
L_CV = L_M + 32
L_XD = L_M + 64
L_GD = L_M + 80
L_GO = L_M + 96
L_G14 = L_M + 112
L_S15 = L_M + 128
L_EW = L_M + 144
L_EC = L_M + 160
L_GO = L_M + 176
L_GO2S = L_GO - L_S15
L_X0 = L_M + 256
XSZ = 2304
LDS_TOTAL = 163840
SPIN_MAX = 400000
WS = "s[36:39]"
NST = 12
QREG = 200

class G:
    stamp = False
    diag = -1
    inC = True

def srd(a, d, b, size):
    a(f"s_mov_b32 s{d}, s{b}")
    a(f"s_mov_b32 s{d+1}, s{b+1}")
    a(f"s_mov_b32 s{d+2}, {hex(size)}")
    a(f"s_mov_b32 s{d+3}, 0x00020000")

def T(a, i):
    if G.stamp: a(f"s_memrealtime s[{70+2*i}:{71+2*i}]")
    elif G.diag == i and G.inC: a("s_memrealtime s[70:71]")

def stamp_out(a):
    if G.diag >= 0 and G.inC:
        n = a.uid("F_DG")
        a("s_cmp_lg_u32 s3, 0"); a(f"s_cbranch_scc1 {n}")
        if G.diag == 11: a("s_waitcnt vmcnt(0)"); a("s_memrealtime s[70:71]")
        a("s_waitcnt lgkmcnt(0)")
        a(f"s_atomic_{G.dop} s70, s[24:25], 128")
        a.label(n)
    if not G.stamp: return
    a("s_waitcnt vmcnt(0)")
    a(f"s_memrealtime s[{70+2*(NST-1)}:{71+2*(NST-1)}]")
    a("s_memtime s[96:97]")
    a("s_waitcnt lgkmcnt(0)")
    for i in range(NST): a(f"v_mov_b32 v{16+i}, s{70+2*i}")
    a("v_mov_b32 v28, s94")
    a("v_mov_b32 v29, s96")
    a("v_mov_b32 v30, 0")
    a("v_mov_b32 v31, 0")
    a("s_lshl_b32 s40, s2, 9")
    a("s_lshl_b32 s41, s3, 6")
    a("s_add_u32 s40, s40, s41")
    a(f"s_add_u32 s40, s40, {hex(WS_ST)}")
    a("s_lshl_b32 s42, s2, 11")
    a("s_lshl_b32 s41, s3, 8")
    a("s_add_u32 s42, s42, s41")
    a(f"s_add_u32 s42, s42, {hex(WS_ST + (1<<20))}")
    a("v_lshlrev_b32 v14, 2, v0")
    a(f"buffer_store_dword v240, v14, {WS}, s42 offen")
    a("v_mov_b32 v14, 0")
    a("s_mov_b64 exec, 1")
    for i in range(4): a(f"buffer_store_dwordx4 v[{16+4*i}:{19+4*i}], v14, {WS}, s40 offen offset:{16*i}")

def lds_wait(a, name, vaddr, vtmp, sleep=1, off=0):
    a.label(name)
    a(f"ds_read_b32 v{vtmp}, v{vaddr} offset:{off}")
    a("s_waitcnt lgkmcnt(0)")
    a(f"v_cmp_ne_u32 vcc, 1, v{vtmp}")
    a(f"s_cbranch_vccz {name}_X")
    if sleep: a(f"s_sleep {sleep}")
    a(f"s_branch {name}")
    a.label(name + "_X")

def spin(a, name, loads, check, scnt, sleep=0):
    a(f"s_mov_b32 s{scnt}, 0")
    a.label(name)
    for l in loads: a(l)
    a("s_waitcnt vmcnt(0)")
    for c in check: a(c)
    a(f"s_cbranch_vccz {name}_X")
    if sleep: a(f"s_sleep {sleep}")
    a(f"s_add_u32 s{scnt}, s{scnt}, 1")
    a(f"s_cmp_lt_u32 s{scnt}, {SPIN_MAX}")
    a(f"s_cbranch_scc1 {name}")
    a.label(name + "_X")

def ctr_addr(a, d, sidx, base):
    a(f"s_lshl_b32 s{d}, s{sidx}, 7")
    a(f"s_add_u32 s{d}, s{d}, {hex(WS_CT + base*128)}")
    a(f"s_add_u32 s{d}, s{d}, s26")
    a(f"s_addc_u32 s{d+1}, s27, 0")

def ctr_wait(a, name, ad, tmp, target, scnt, sleep=2, first=False):
    a(f"s_mov_b32 s{scnt}, 0")
    a.label(name)
    a(f"s_mov_b32 s{tmp}, 0")
    a(f"s_atomic_add s{tmp}, s[{ad}:{ad+1}], 0 glc")
    a("s_waitcnt lgkmcnt(0)")
    a(f"s_cmp_ge_u32 s{tmp}, {target}")
    a(f"s_cbranch_scc1 {name}_X")
    if sleep: a(f"s_sleep {sleep}")
    a(f"s_add_u32 s{scnt}, s{scnt}, 1")
    a(f"s_cmp_lt_u32 s{scnt}, {SPIN_MAX}")
    a(f"s_cbranch_scc1 {name}")
    a.label(name + "_X")

def spf_setup(w, bx, bw, t0, t1):
    return [f"s_lshl_b32 s{t0}, s28, 19", f"s_lshl_b32 s{t1}, s29, 14", f"s_add_u32 s{t0}, s{t0}, s{t1}", f"s_lshl_b32 s{t1}, s{w}, 12", f"s_add_u32 s{t0}, s{t0}, s{t1}",
            f"s_add_u32 s{t0}, s{t0}, 60", f"s_add_u32 s{bx}, s4, s{t0}", f"s_addc_u32 s{bx+1}, s5, 0",
            f"s_lshl_b32 s{t0}, s29, 1", f"s_lshr_b32 s{t1}, s{w}, 1", f"s_add_u32 s{t0}, s{t0}, s{t1}", f"s_mul_i32 s{t0}, s{t0}, 6144",
            f"s_lshl_b32 s{t1}, s28, 8", f"s_add_u32 s{t0}, s{t0}, s{t1}", f"s_and_b32 s{t1}, s{w}, 1", f"s_lshl_b32 s{t1}, s{t1}, 7", f"s_add_u32 s{t0}, s{t0}, s{t1}",
            f"s_add_u32 s{t0}, s{t0}, 60", f"s_add_u32 s{bw}, s6, s{t0}", f"s_addc_u32 s{bw+1}, s7, 0"]
def spf_list(bx, bw, junk, tmp, s0=4):
    out = []
    for st in range(s0, 16):
        for seg in range(3): out.append([f"s_mov_b32 s{tmp}, {st*393216 + seg*2048}", f"s_load_dwordx2 s[{junk}:{junk+1}], s[{bw}:{bw+1}], s{tmp}"])
        for r in range(2): out.append([f"s_load_dwordx2 s[{junk}:{junk+1}], s[{bx}:{bx+1}], {st*128 + r*2048}"])
    return out

def gen(stamp=False, opt=None):
    global OUTF, OUTB
    opt = opt or {}
    OUTF = {0: "", 1: " nt", 2: " sc1", 3: " sc0 sc1"}[opt.get("outf", 2)]
    OUTB = {0: "", 1: " nt", 2: " sc1", 3: " sc0 sc1"}[opt.get("outb", 2)]
    G.stamp = stamp
    G.diag = opt.get("diag", -1); G.dop = "umax"; G.inC = True
    a = Asm()
    if opt.get("tok0"): a("s_memrealtime s[92:93]")
    a("s_load_dwordx16 s[4:19], s[0:1], 0")
    a("s_cmp_ge_u32 s2, 256")
    a("s_cbranch_scc1 F_END")
    T(a, 0)
    if stamp: a("s_memtime s[94:95]")
    a("v_lshrrev_b32 v1, 6, v0")
    a("v_and_b32 v0, 63, v0")
    a("s_and_b32 s28, s2, 7")
    a("s_lshr_b32 s29, s2, 3")
    a("v_readfirstlane_b32 s3, v1")
    a("s_and_b32 s30, s28, 1")
    a("s_lshl_b32 s30, s30, 3")
    a("s_and_b32 s31, s29, 7")
    a("s_add_u32 s30, s30, s31")
    a("s_lshr_b32 s31, s28, 1")
    a("s_lshl_b32 s31, s31, 2")
    a("s_lshr_b32 s32, s29, 3")
    a("s_add_u32 s31, s31, s32")
    if opt.get("map16", 1):
        a("s_lshr_b32 s30, s29, 1")
        a("s_and_b32 s31, s29, 1")
        a("s_lshl_b32 s32, s28, 1")
        a("s_add_u32 s31, s31, s32")
    a("s_cmp_lt_u32 s3, 4")
    a("s_cbranch_scc1 F_C")
    G.inC = False
    gen_L(a, opt)
    G.inC = True
    a.label("F_C")
    gen_C(a, opt)
    a.label("F_END")
    a("s_endpgm")
    return a

def common2(a):
    a("s_load_dwordx8 s[20:27], s[0:1], 64")
    a("s_and_b32 s32, s29, 3")
    a("s_lshr_b32 s33, s28, 1")
    a("s_lshl_b32 s33, s33, 2")
    a("s_add_u32 s32, s32, s33")
    a("s_and_b32 s33, s28, 1")
    a("s_lshl_b32 s33, s33, 3")
    a("s_lshr_b32 s35, s29, 2")
    a("s_add_u32 s33, s33, s35")
    a("v_lshlrev_b32 v1, 4, v0")

def handoff_addrs(a, w, d):
    a(f"s_and_b32 s40, s{w}, 1")
    a("s_lshl_b32 s41, s31, 1")
    a("s_add_u32 s40, s40, s41")
    a(f"s_lshr_b32 s41, s{w}, 1")
    a(f"s_lshl_b32 s{d+2}, s30, 1")
    a(f"s_add_u32 s{d+2}, s{d+2}, s41")
    a(f"s_mul_i32 s{d+2}, s{d+2}, {4*OP//1024}")
    a(f"s_add_u32 s{d+2}, s{d+2}, s40")
    a(f"s_lshl_b32 s{d+2}, s{d+2}, 10")
    a(f"s_add_u32 s{d+2}, s{d+2}, {hex(WS_O)}")
    a(f"s_lshl_b32 s{d}, s40, 15")
    a(f"s_lshl_b32 s{d+1}, s41, 10")
    a(f"s_add_u32 s{d+3}, s{d}, s{d+1}")
    a(f"s_lshl_b32 s{d}, s30, 11")
    a(f"s_add_u32 s{d}, s{d}, s{d+3}")
    a("s_lshl_b32 s40, s40, 11")
    a(f"s_add_u32 s{d+4}, s40, s{d+1}")
    a(f"s_add_u32 s{d+4}, s{d+4}, {hex(WS_ZP)}")
    a(f"s_lshl_b32 s{d+1}, s30, 6")
    a(f"s_add_u32 s{d+1}, s{d+1}, s{d+4}")

def gen_C(a, opt):
    vX = [2, 3]; vW = [4, 5]
    XF = 16; WF = 80; ACC = 104
    vXo, vXp, vZo, vZp, vFo, vFp, vQ16, vZL = 6, 7, 8, 9, 10, 11, 12, 13
    vK = [200, 201, 202, 203]; vGD, vGO, vXD, vO0, vPR, vCV, vOUT, vONE = 204, 205, 206, 207, 208, 209, 210, 14
    common2(a)
    a("s_lshr_b32 s34, s3, 1")
    a("s_and_b32 s35, s3, 1")
    a("v_and_b32 v16, 15, v0")
    a("v_lshrrev_b32 v17, 4, v0")
    a("v_lshrrev_b32 v18, 1, v16")
    a("v_xor_b32 v18, v18, v17")
    a("v_lshlrev_b32 v18, 4, v18")
    a("v_and_b32 v19, 7, v0")
    a("v_lshl_add_u32 v18, v19, 7, v18")
    a("v_bfe_u32 v19, v0, 3, 1")
    a(f"v_mul_u32_u24 v19, {WSEG}, v19")
    a("s_lshl_b32 s40, s34, 11")
    a(f"s_add_u32 s40, s40, {STAGE}")
    a(f"v_add3_u32 v{vX[0]}, v18, v19, s40")
    a(f"v_xor_b32 v{vX[1]}, 64, v{vX[0]}")
    a("v_bfe_u32 v18, v0, 2, 2")
    a("v_lshlrev_b32 v18, 7, v18")
    a("v_and_b32 v19, 3, v0")
    a("v_lshl_add_u32 v18, v19, 3, v18")
    a("v_bfe_u32 v19, v0, 3, 2")
    a("v_lshlrev_b32 v19, 5, v19")
    a(f"v_lshl_add_u32 v{vO0}, v17, 9, v18")
    a(f"v_add_u32 v{vO0}, v{vO0}, v19")
    a("s_lshl_b32 s40, s35, 6")
    a("s_lshl_b32 s41, s34, 5")
    a("s_or_b32 s40, s40, s41")
    a("v_xor_b32 v19, s40, v19")
    a(f"v_mul_u32_u24 v20, {WSEG}, v17")
    a("v_add3_u32 v18, v18, v19, v20")
    a(f"v_add_u32 v{vW[0]}, {STAGE + 4096}, v18")
    a(f"v_xor_b32 v{vW[1]}, 32, v{vW[0]}")
    a("v_mov_b32 v18, 0")
    a("v_lshlrev_b32 v19, 2, v0")
    a(f"v_add_u32 v20, {L_M}, v19")
    a("ds_write_b32 v20, v18")
    a(f"s_mov_b32 s42, {hex(EPS)}")
    a(f"s_mov_b32 s43, {hex(LOG2E)}")
    a("s_mov_b32 s49, 0x3f803f80")
    order = [(1,0),(1,1),(2,0),(2,1),(0,0),(0,1)]
    def acc(j, i): return ACC + (j*4 + i)*4
    for j in range(6):
        for i in range(16): a(f"v_mov_b32 v{ACC+16*j+i}, {'0' if order[j][0] == 2 else 's42'}")
    handoff_addrs(a, 3, 50)
    a(f"s_mul_i32 s40, s35, {XSZ}")
    a(f"s_add_u32 s58, s40, {L_X0}")
    a(f"s_add_u32 s59, s40, {L_X2}")
    a("s_cmp_eq_u32 s34, 0")
    a("s_cselect_b32 s40, s58, s59")
    a("s_cselect_b32 s41, s59, s58")
    a(f"v_lshlrev_b32 v{vQ16}, 4, v17")
    a(f"v_add_u32 v{vXo}, s40, v1")
    a(f"v_add_u32 v{vXp}, s41, v1")
    a(f"v_add_u32 v{vZo}, s40, v{vQ16}")
    a(f"v_add_u32 v{vZp}, s41, v{vQ16}")
    a("s_lshl_b32 s40, s3, 3")
    a(f"s_add_u32 s41, s40, {L_FLG}")
    a(f"v_mov_b32 v{vFo}, s41")
    a(f"v_xor_b32 v{vFp}, 16, v{vFo}")
    a(f"v_lshl_add_u32 v{vZL}, v16, 6, v{vQ16}")
    a("s_lshl_b32 s40, s34, 3")
    a("s_add_u32 s41, s59, s40")
    a(f"v_add_u32 v{vK[0]}, s41, v1")
    a(f"v_xor_b32 v{vK[1]}, 8, v{vK[0]}")
    a("s_add_u32 s41, s58, s40")
    a(f"v_add_u32 v{vK[3]}, s41, v1")
    a(f"v_xor_b32 v{vK[2]}, 8, v{vK[3]}")
    a("s_lshl_b32 s40, s3, 2")
    a(f"s_add_u32 s41, s40, {L_GD}")
    a(f"v_mov_b32 v{vGD}, s41")
    a(f"s_add_u32 s41, s40, {L_XD}")
    a(f"v_mov_b32 v{vXD}, s41")
    a("v_lshlrev_b32 v18, 1, v17")
    a("v_and_b32 v20, 7, v0")
    a("v_xor_b32 v18, v18, v20")
    a("v_lshlrev_b32 v18, 4, v18")
    a("v_lshrrev_b32 v20, 3, v0")
    a("v_lshl_add_u32 v205, v20, 11, v18")
    a(f"v_mov_b32 v{vONE}, 1")
    a("v_and_b32 v18, 12, v19")
    a(f"v_add_u32 v{vCV}, {L_M}, v18")
    a(f"v_add_u32 v211, {L_EW - L_M}, v{vCV}")
    a(f"v_add_u32 v20, {(L_EC if opt.get('wol', 1) == 2 or opt.get('wloop') else L_EW) - L_M}, v{vCV}")
    a(f"v_subrev_u32 v21, {8 if opt.get('wloop') else 12}, v0")
    a(f"v_cmp_gt_u32 vcc, {16 if opt.get('wloop') else 12}, v21")
    a("v_and_b32 v18, 4, v19")
    a(f"v_add_u32 v18, {L_CV + 16}, v18")
    a("v_cndmask_b32 v211, v211, v20, vcc")
    a("v_and_b32 v21, 31, v0")
    a("v_cmp_lt_u32 vcc, 23, v21")
    a("s_nop 1")
    a("v_cndmask_b32 v211, v211, v18, vcc")
    a("s_lshl_b32 s55, s32, 2")
    a("s_add_u32 s55, s55, s3")
    a("s_lshl_b32 s56, s55, 17")
    a("s_lshl_b32 s40, s33, 7")
    a("s_add_u32 s56, s56, s40")
    a(f"s_mul_i32 s55, s55, {2*OP}")
    a(f"s_add_u32 s55, s55, {hex(WS_O)}")
    if opt.get("pr32", 1):
        a("v_and_b32 v18, 31, v0")
        a("v_add_u32 v18, 33, v18")
        if opt.get("pr1", 1):
            a("s_xor_b32 s40, s35, 1")
            a("s_mul_i32 s40, s40, 66")
            a("v_add_u32 v18, s40, v18")
    else:
        a("v_lshrrev_b32 v18, 5, v0")
        a("v_add_u32 v18, v18, v0")
    a(f"v_lshlrev_b32 v{vPR}, 10, v18")
    a("s_and_b32 s57, s33, 7")
    a("s_mul_i32 s57, s57, 3")
    a("s_lshr_b32 s57, s57, 2" if opt.get("rot2", 1) else "s_mov_b32 s57, 0")
    a(f"v_lshlrev_b32 v{vOUT}, 12, v16")
    a("v_bfe_u32 v18, v0, 4, 1")
    a(f"v_lshl_add_u32 v{vOUT}, v18, 5, v{vOUT}")
    a("v_lshrrev_b32 v18, 5, v0")
    a(f"v_lshl_add_u32 v{vOUT}, v18, 4, v{vOUT}")
    a("s_mov_b32 s44, 0")
    a("s_mov_b32 s45, 1")
    a(f"s_mov_b32 s46, {hex((-2*STAGE) & 0xffffffff)}")
    a(f"s_mov_b32 s47, {STAGE}")
    a("s_waitcnt lgkmcnt(0)")
    srd(a, 36, 26, WS_SIZE)
    srd(a, 60, 22, 8 << 20)
    srd(a, 64, 26, WS_SIZE)
    if opt.get("tlb"):
        sh = {2048: 21, 512: 19, 256: 18, 64: 16}[opt["tlb"]]
        per = max(1, (4 << 20 >> sh) // 32 if opt.get("tlbs") else (4 << 20 >> sh))
        a(f"v_and_b32 v20, {per-1}, v0")
        if opt.get("tlbs"):
            a(f"s_mul_i32 s40, s29, {per}")
            a("v_add_u32 v20, s40, v20")
        a(f"v_lshlrev_b32 v20, {sh}, v20")
        a(f"v_and_b32 v20, {hex((4<<20)-1)}, v20")
        a("v_add_u32 v20, 0x780, v20")
        lst = [[(10, 4, 0), (12, 4, 0), (26, 256, 0)], [(14, 4, 0), (18, 4, 0), (26, 256, 1)], [(22, 8, 0), (8, 2, 0), (26, 256, 2), (26, 256, 4)], [(22, 8, 1), (20, 0, 0), (26, 256, 3), (16, 0, 0)]]
        for w in range(4):
            a(f"s_cmp_lg_u32 s3, {w}")
            a(f"s_cbranch_scc1 F_TL{w}")
            for b, size, k in lst[w]:
                srd(a, 4, b, (size << 20) if size else 2048)
                a(f"s_mov_b32 s40, {k << 22}")
                a("buffer_load_dword v251, v20, s[4:7], s40 offen")
            a.label(f"F_TL{w}")
    if opt.get("spf"):
        for x in spf_setup(3, 98, 100, 40, 41): a(x)
        for grp in spf_list(98, 100, 58, 40)[:opt.get("spc", 18)]:
            for x in grp: a(x)
    a("s_cmp_lg_u32 s2, 0")
    a("s_cbranch_scc1 F_NOINIT")
    for i in range(4): a(f"v_mov_b32 v{20+i}, 0")
    a("s_mul_i32 s40, s3, 6144")
    a(f"s_add_u32 s40, s40, {hex(WS_CT)}")
    a("s_add_u32 s41, s40, 4096")
    for i in range(6): a(f"buffer_store_dwordx4 v[20:23], v1, {WS}, s{40 if i < 4 else 41} offen offset:{(i%4)*1024} sc1")
    a("s_mov_b32 s40, 1")
    a("s_waitcnt vmcnt(0)")
    a("s_atomic_add s40, s[24:25], 0")
    a("s_waitcnt lgkmcnt(0)")
    a.label("F_NOINIT")
    a("s_lshl_b32 s40, s31, 2")
    a("s_lshl_b32 s41, s35, 1")
    a("s_add_u32 s40, s40, s41")
    a("s_add_u32 s40, s40, s34")
    ctr_addr(a, 10, 40, CT_P)
    a("s_lshl_b32 s40, s30, 1")
    a("s_add_u32 s40, s40, s34")
    ctr_addr(a, 12, 40, CT_O)
    a("s_lshl_b32 s40, s32, 1")
    a("s_add_u32 s40, s40, s34")
    ctr_addr(a, 14, 40, CT_O)
    a("s_lshr_b32 s40, s31, 1")
    a("s_lshl_b32 s40, s40, 2")
    a("s_lshl_b32 s16, 1, s40")
    srd(a, 4, 8, 2 << 20)
    a("s_lshl_b32 s68, s3, 10")
    a("s_lshl_b32 s69, s3, 14")
    a("s_lshl_b32 s40, s33, 7")
    a("s_add_u32 s69, s69, s40")

    def ldX(par, i, ks):
        return ('ld', 'lgkm', f"ds_read_b128 {vr(XF+par*32+(i*2+ks)*4,4)}, v{vX[ks]} offset:{(i&1)*2*WSEG + (i>>1)*1024}", f"X{par}.{i}.{ks}")
    def ldW(j):
        seg, half = order[j]; b = j % 3; out = []
        for ks in range(2):
            for jh in range(2):
                out.append(('ld', 'lgkm', f"ds_read_b64_tr_b16 {vr(WF+b*8+ks*4+jh*2,2)}, v{vW[half]} offset:{(ks*3+seg)*1024 + jh*512}", f"W{b}.{ks}.{jh}"))
        return out
    def mf(par, j, i, ks):
        b = j % 3; d = acc(j, i)
        A = vr(XF+par*32+(i*2+ks)*4, 4); B = vr(WF+b*8+ks*4, 4)
        if order[j][0] == 0: A, B = B, A
        return ('use', f"v_mfma_f32_16x16x32_bf16 {vr(d,4)}, {A}, {B}, {vr(d,4)}", [f"X{par}.{i}.{ks}", f"W{b}.{ks}.0", f"W{b}.{ks}.1"])
    if opt.get("spf"): a("s_waitcnt lgkmcnt(0)")
    a("s_barrier")
    T(a, 1)
    pro = ldW(0)[:2] + [ldX(0,0,0)] + ldW(0)[2:] + [ldX(0,0,1), ldX(0,1,0), ldX(0,1,1), ldX(0,2,0), ldX(0,2,1)] + ldW(1) + [ldX(0,3,0), ldX(0,3,1)]
    for it in pro: a(it[2])
    body = []
    for par in range(2):
        pend = []; np_ = par ^ 1
        for j in range(6):
            if j <= 3: pend += ldW(j+2)
            n = 0
            for i in range(4):
                for ks in range(2):
                    m = mf(par, j, i, ks); n += 1
                    b = j % 3
                    if n == 1: m = (m[0], m[1], m[2] + [f"W{b}.1.0", f"W{b}.1.1"] + ([f"X{par}.0.1", f"X{par}.1.0", f"X{par}.1.1"] if j == 0 else []))
                    if n == 5 and j == 0: m = (m[0], m[1], m[2] + [f"X{par}.3.0", f"X{par}.3.1", f"X{par}.2.1", "W1.0.0", "W1.0.1", "W1.1.0", "W1.1.1"])
                    if n == 1 and j == 4: m = (m[0], m[1], m[2] + ["W2.0.0", "W2.0.1", "W2.1.0", "W2.1.1"])
                    body.append(m)
                    per = 1
                    if j == 3 and n == 5:
                        pend += [('i', "s_add_u32 s45, s45, 1"), ('i', "s_cmp_eq_u32 s45, 3"), ('i', "s_cselect_b32 s48, s46, s47"), ('i', "s_cselect_b32 s45, 0, s45")]
                    if j == 3 and n >= 5: per = 2
                    if j == 3 and n == 7:
                        pend += [('i', f"v_add_u32 v{r}, s48, v{r}") for r in (vW[0], vX[0], vX[1], vW[1])]
                    if j == 2 and n == 6 and par == 0: pend += [('i', "s_add_u32 s44, s44, 1")]
                    if j == 4 and n == 1:
                        w0 = ldW(0)
                        pend += [('i', f"@BAR{par}")] + w0[:2] + [ldX(np_,0,0)] + w0[2:] + [ldX(np_,0,1), ldX(np_,1,0), ldX(np_,1,1)]
                    if j == 4 and n in (2, 3): per = 2
                    if j == 5 and n == 1:
                        pend += [ldX(np_,2,0), ldX(np_,2,1)] + ldW(1) + [ldX(np_,3,0), ldX(np_,3,1)]
                    if j == 5 and n <= 3: per = 2
                    if n == 8 and j not in (3,): per = 0
                    for _ in range(per):
                        if pend: body.append(pend.pop(0))
            assert not pend, (j, pend)
    lines = insert_waits([(it[1], it[3]) for it in pro], body)
    a(".p2align 6")
    a.label("F_CLOOP")
    for l in lines:
        if l.startswith("@BAR"):
            par = l[4:]
            a("s_cmp_lt_u32 s44, 8")
            a(f"s_cbranch_scc0 F_CNB{par}")
            a("s_barrier")
            a.label(f"F_CB{par}")
        else: a(l)
    a("s_cbranch_scc1 F_CLOOP")
    if opt.get("cprio", 1): a("s_setprio 3")
    T(a, 2)
    if opt.get("g1only"):
        stamp_out(a); a("s_endpgm"); gen_C_tail(a, vGD, vONE, vCV); return

    PKF = 212; VF = 228; TT = 244; ONES = 252
    KV = acc(2, 0); Z = acc(3, 0); PQF = 84
    def phi8(s0, s1, dst, pk=False):
        src = [s0+i for i in range(4)] + [s1+i for i in range(4)]
        if pk:
            for i in range(0, 8, 2): a(f"v_pk_mul_f32 {vr(TT+i,2)}, {vr(src[i],2)}, s[46:47]")
        else:
            for i in range(8): a(f"v_mul_f32 v{TT+i}, s43, v{src[i]}")
        for i in range(8):
            a(f"v_exp_f32 v{TT+i}, v{TT+i} clamp")
            a(f"v_max_f32 v{src[i]}, s42, v{src[i]}")
        if pk:
            for i in range(0, 8, 2): a(f"v_pk_add_f32 {vr(TT+i,2)}, {vr(TT+i,2)}, {vr(src[i],2)}")
        else:
            for i in range(8): a(f"v_add_f32 v{TT+i}, v{TT+i}, v{src[i]}")
        for i in range(4): a(f"v_cvt_pk_bf16_f32 v{dst+i}, v{TT+2*i}, v{TT+2*i+1}")
    PKK = bool(opt.get("pkk", 0))
    a("s_mov_b32 s46, s43")
    a("s_mov_b32 s47, s43")
    phi8(acc(0, 0), acc(0, 1), PKF, PKK)
    for i in range(4): a(f"v_mov_b32 v{ONES+i}, s49")
    for u in range(2):
        for i in range(4):
            s = acc(2+u, i); d = VF + u*8 + i*2
            a(f"v_cvt_pk_bf16_f32 v{d}, v{s}, v{s+1}")
            a(f"v_cvt_pk_bf16_f32 v{d+1}, v{s+2}, v{s+3}")
    seq = [(0,0),(1,0),(0,1),(1,1)]
    for n, (t, rho) in enumerate(seq):
        A = vr(PKF + (n & 1)*4, 4)
        ms = []
        for u in (1, 0):
            d = KV + (t*2+u)*4
            ms.append(f"v_mfma_f32_16x16x32_bf16 {vr(d,4)}, {A}, {vr(VF+u*8+rho*4,4)}, {'0' if rho == 0 else vr(d,4)}")
        d = Z + t*4
        ms.append(f"v_mfma_f32_16x16x32_bf16 {vr(d,4)}, {A}, {vr(ONES,4)}, {'0' if rho == 0 else vr(d,4)}")
        for m in ms: a(m)
        if n < 3:
            t2, r2 = seq[n+1]
            phi8(acc(t2, 2*r2), acc(t2, 2*r2+1), PKF + ((n+1) & 1)*4, PKK)
    a(f"ds_write_b128 v{vXo}, {vr(KV+4,4)}")
    a(f"ds_write_b128 v{vXo}, {vr(KV+12,4)} offset:1024")
    a(f"ds_write_b128 v{vZo}, {vr(Z+4,4)} offset:2048")
    a(f"ds_write_b32 v{vFo}, v{vONE}")
    R0 = 212
    a.label("F_XA")
    a(f"ds_read_b32 v15, v{vFp}")
    a(f"ds_read_b128 {vr(R0,4)}, v{vXp} offset:1024")
    a(f"ds_read_b128 {vr(R0+4,4)}, v{vXp}")
    a(f"ds_read_b128 {vr(R0+8,4)}, v{vZp} offset:2048")
    a("s_waitcnt lgkmcnt(0)")
    a("v_cmp_ne_u32 vcc, 1, v15")
    a("s_cbranch_vccnz F_XA")
    for i in range(4): a(f"v_add_f32 v{R0+i}, v{R0+i}, v{KV+i}")
    for i in range(4): a(f"v_add_f32 v{R0+4+i}, v{R0+4+i}, v{KV+8+i}")
    for i in range(4): a(f"v_cvt_pk_bf16_f32 v{R0+12+i}, v{R0+2*i}, v{R0+2*i+1}")
    PF_ = "" if opt.get("plainp") else " sc1"
    a(f"buffer_store_dwordx4 {vr(R0+12,4)}, v1, {WS}, s50 offen{PF_}")
    for i in range(4): a(f"v_add_f32 v{R0+8+i}, v{R0+8+i}, v{Z+i}")
    a("s_mov_b32 exec_lo, 0x00010001")
    a("s_mov_b32 exec_hi, 0x00010001")
    a(f"buffer_store_dwordx4 {vr(R0+8,4)}, v{vQ16}, {WS}, s51 offen{PF_}")
    a("s_mov_b64 exec, -1")
    T(a, 3)
    ZL = 100; KL = 16; KS = 104; EP = 112; SEL = 140; KF = 124; ZF = 132
    for i in range(4): a(f"v_mov_b32 v{EP+i}, s42")
    a("v_bfe_u32 v116, v0, 2, 2")
    a("v_lshrrev_b32 v117, 4, v0")
    a("v_cmp_eq_u32 vcc, v116, v117")
    a("v_and_b32 v116, 1, v0")
    a("v_lshlrev_b32 v116, 4, v116")
    a("v_mov_b32 v117, 0x3f80")
    a("v_lshlrev_b32 v116, v116, v117")
    a("v_cndmask_b32 v116, 0, v116, vcc")
    a("v_and_b32 v117, 2, v0")
    a("v_cmp_eq_u32 vcc, 0, v117")
    for r in (2, 3, 4, 5): a(f"v_mov_b32 v{SEL+r}, 0")
    a(f"v_cndmask_b32 v{SEL}, 0, v116, vcc")
    a(f"v_cndmask_b32 v{SEL+6}, 0, v116, vcc")
    a(f"v_cndmask_b32 v{SEL+1}, v116, v{SEL+2}, vcc")
    a(f"v_cndmask_b32 v{SEL+7}, v116, v{SEL+2}, vcc")
    if opt.get("r2", 1):
        NB = opt.get("nb", 3); KS2 = 148
        for i in range(NB): phi8(acc(4, i), acc(5, i), PQF + i*4)
        a("s_mov_b32 s17, 1")
        a("s_waitcnt vmcnt(0)")
        a("s_atomic_add s17, s[10:11], 0 glc")
        for i in range(NB, 4): phi8(acc(4, i), acc(5, i), PQF + i*4)
        a("s_waitcnt lgkmcnt(0)")
        T(a, 4)
        a("s_cmp_ge_u32 s17, 15")
        a("s_cbranch_scc1 F_P2_X")
        ctr_wait(a, "F_P2", 10, 17, 16, 45, sleep=opt.get("sl2", 3))
        T(a, 5)
        a(f"buffer_load_dwordx4 {vr(ZL,4)}, v{vZL}, {WS}, s54 offen sc1")
        kv_issue(a, KL, opt)
        zr = [f"v_add_f32_dpp v{120+i}, v{ZL+i}, v{ZL+i} row_ror:8 row_mask:0xf bank_mask:0xf" for i in range(4)]
        for sh in (4, 2, 1): zr += [f"v_add_f32_dpp v{120+i}, v{120+i}, v{120+i} row_ror:{sh} row_mask:0xf bank_mask:0xf" for i in range(4)]
        zr += [f"v_cvt_pk_bf16_f32 v{ZF}, v120, v121", f"v_cvt_pk_bf16_f32 v{ZF+1}, v122, v123"]
        for p in range(16):
            if p % 2 == 0: a(f"s_waitcnt vmcnt({14-p})")
            for t in range(2):
                d = (KS if p % 2 == 0 else KS2) + 4*t
                a(f"v_mfma_f32_16x16x32_bf16 {vr(d,4)}, {vr(SEL+4*t,4)}, {vr(KL+4*p,4)}, {'0' if p < 2 else vr(d,4)}")
                if zr: a(zr.pop(0))
        for i in range(8): a(f"v_add_f32 v{KS+i}, v{KS+i}, v{KS2+i}")
    else:
        NQ1 = 2
        phi8(acc(4, 0), acc(5, 0), PQF)
        DYN = opt.get("dyn", 0)
        a("s_lshl_b32 s17, 1, s30" if DYN else "s_mov_b32 s17, 1")
        a("s_mov_b32 s19, s17")
        if opt.get("st2"): T(a, 8)
        a("s_waitcnt vmcnt(0)")
        if opt.get("st2"): T(a, 9)
        a("s_atomic_add s17, s[10:11], 0 glc")
        phi8(acc(4, 1), acc(5, 1), PQF + 4)
        a("s_waitcnt lgkmcnt(0)")
        if DYN:
            a("s_or_b32 s17, s17, s19")
            a("s_cmp_lg_u32 s17, 0xffff")
        else:
            a("s_cmp_lt_u32 s17, 15")
        a("s_cbranch_scc1 F_K1N")
        T(a, 4)
        def capture(fn):
            n = len(a.lines); fn(); out = a.lines[n:]; del a.lines[n:]; return out
        def zred():
            for i in range(4): a(f"v_add_f32_dpp v{120+i}, v{ZL+i}, v{ZL+i} row_ror:8 row_mask:0xf bank_mask:0xf")
            for sh in (4, 2, 1):
                for i in range(4): a(f"v_add_f32_dpp v{120+i}, v{120+i}, v{120+i} row_ror:{sh} row_mask:0xf bank_mask:0xf")
            a(f"v_cvt_pk_bf16_f32 v{ZF}, v120, v121")
            a(f"v_cvt_pk_bf16_f32 v{ZF+1}, v122, v123")
        def ksum(p):
            out = []
            if p % 2 == 0: out.append(f"s_waitcnt vmcnt({14-p})")
            for t in range(2):
                out.append(f"v_mfma_f32_16x16x32_bf16 {vr(KS+4*t,4)}, {vr(SEL+4*t,4)}, {vr(KL+4*p,4)}, {'0' if p == 0 else vr(KS+4*t,4)}")
            return out
        zld = f"buffer_load_dwordx4 {vr(ZL,4)}, v{vZL}, {WS}, s54 offen sc1"
        ld = capture(lambda: kv_issue(a, KL, opt))
        va = capture(lambda: [phi8(acc(4, i), acc(5, i), PQF + i*4) for i in range(NQ1, 4)])
        zr = capture(zred)
        k1 = opt.get("k1", 2)
        a(zld)
        for l in ld:
            a(l)
            if l.startswith("buffer_load"):
                for _ in range(k1):
                    if va: a(va.pop(0))
        va = va + ["s_waitcnt vmcnt(16)"] + zr
        k2 = -(-len(va) // 16)
        for p in range(16):
            for _ in range(k2):
                if va: a(va.pop(0))
            for l in ksum(p): a(l)
        a("s_branch F_K2X")
        if DYN:
            a.label("F_K1N")
            def issue_mask(m, tag):
                for p in range(16):
                    a(f"s_bitcmp1_b32 s{m}, {p}")
                    a(f"s_cbranch_scc0 F_{tag}{p}")
                    a(f"s_add_u32 s40, s53, {(p>>1)*4096}")
                    a(f"buffer_load_dwordx4 {vr(KL+4*p,4)}, v1, {WS}, s40 offen offset:{(p&1)*2048} sc1")
                    a.label(f"F_{tag}{p}")
            issue_mask(17, "DA")
            for i in range(8): a(f"v_mov_b32 v{KS+i}, 0")
            for i in range(NQ1, 4): phi8(acc(4, i), acc(5, i), PQF + i*4)
            T(a, 4)
            a("s_mov_b32 s19, s17")
            a("s_mov_b32 s59, s17")
            a("s_mov_b32 s45, 0")
            a.label("F_DL")
            a("s_cmp_eq_u32 s19, 0xffff")
            a("s_cbranch_scc1 F_DS")
            a("s_mov_b32 s17, 0")
            a("s_atomic_add s17, s[10:11], 0 glc")
            a.label("F_DS")
            a("s_waitcnt vmcnt(0)")
            for p in range(16):
                a(f"s_bitcmp1_b32 s59, {p}")
                a(f"s_cbranch_scc0 F_DM{p}")
                for t in range(2): a(f"v_mfma_f32_16x16x32_bf16 {vr(KS+4*t,4)}, {vr(SEL+4*t,4)}, {vr(KL+4*p,4)}, {vr(KS+4*t,4)}")
                a.label(f"F_DM{p}")
            a("s_cmp_eq_u32 s19, 0xffff")
            a("s_cbranch_scc1 F_DX")
            a("s_add_u32 s45, s45, 1")
            a("s_waitcnt lgkmcnt(0)")
            a(f"s_cmp_gt_u32 s45, {SPIN_MAX}")
            a("s_cselect_b32 s17, 0xffff, s17")
            a("s_andn2_b32 s59, s17, s19")
            a("s_cbranch_scc1 F_DI")
            a(f"s_sleep {opt.get('sl2', 3)}")
            a("s_branch F_DL")
            a.label("F_DI")
            a("s_mov_b32 s19, s17")
            a("s_cmp_lg_u32 s17, 0xffff")
            a("s_cbranch_scc1 F_DJ")
            T(a, 5)
            a(zld)
            a.label("F_DJ")
            issue_mask(59, "DB")
            a("s_branch F_DL")
            a.label("F_DX")
            for l in zr: a(l)
        else:
            a.label("F_K1N")
            for i in range(NQ1, 4): phi8(acc(4, i), acc(5, i), PQF + i*4)
            T(a, 4)
            ctr_wait(a, "F_P2", 10, 17, 16, 45, sleep=opt.get("sl2", 3))
            T(a, 5)
            a(zld)
            for l in ld: a(l)
            a("s_waitcnt vmcnt(16)")
            for l in zr: a(l)
            for p in range(16):
                for l in ksum(p): a(l)
    a.label("F_K2X")
    for i in range(4): a(f"v_cvt_pk_bf16_f32 v{136+i}, v{KS+2*i}, v{KS+2*i+1}")
    T(a, 6)
    a(f"ds_write_b128 v{vXp}, {vr(136,4)}")
    a(f"ds_write_b64 v{vZp}, {vr(ZF,2)} offset:2048")
    a(f"ds_write_b32 v{vFo}, v{vONE} offset:4")
    if not opt.get("wol", 1):
        lds_wait(a, "F_WGD2", vCV, 15, off=L_GD - L_M)
        wo_c(a, range(0, 5))
    a.label("F_XB")
    a(f"ds_read_b32 v15, v{vFp} offset:4")
    a(f"ds_read_b64 {vr(ZF+2,2)}, v{vZo} offset:2048")
    for k in range(4): a(f"ds_read_b64 {vr(KF+2*k,2)}, v{vK[k]}")
    a("s_waitcnt lgkmcnt(0)")
    a("v_cmp_ne_u32 vcc, 1, v15")
    a("s_cbranch_vccnz F_XB")
    DEN = 140; NUM = 156; OO = 212
    for i in range(4): a(f"v_mfma_f32_16x16x32_bf16 {vr(DEN+4*i,4)}, {vr(ZF,4)}, {vr(PQF+4*i,4)}, {vr(EP,4)}")
    for i in range(4):
        for u in range(2):
            a(f"v_mfma_f32_16x16x32_bf16 {vr(NUM+8*i+4*u,4)}, {vr(KF+4*u,4)}, {vr(PQF+4*i,4)}, 0")
    a(f"ds_write_b32 v{vXD}, v{vONE}")
    if not opt.get("wol", 1): wo_c(a, range(5, 10))
    a("s_mov_b32 s17, 0")
    a("s_atomic_add s17, s[14:15], 0 glc")
    a("ds_read_b32 v10, v211")
    for i in range(4): a(f"v_rcp_f32 v{DEN+4*i}, v{DEN+4*i}")
    for i in range(4):
        for r in range(8): a(f"v_mul_f32 v{NUM+8*i+r}, v{NUM+8*i+r}, v{DEN+4*i}")
        for r in range(4): a(f"v_cvt_pk_bf16_f32 v{OO+4*i+r}, v{NUM+8*i+2*r}, v{NUM+8*i+2*r+1}")
        a(f"buffer_store_dwordx4 {vr(OO+4*i,4)}, v1, {WS}, s52 offen sc1")
        if i < 3: a(f"s_add_u32 s52, s52, {OP}")
    T(a, 7)
    WOL2 = opt.get("wol", 1) == 2
    if WOL2:
        lds_wait(a, "F_WGD2", vCV, 15, off=L_GD - L_M)
        wo_c(a, range(0, 10))
    vO = [2, 3, 4, 5]
    AC2 = 16; WO = 48; OF = 80
    a(f"v_add_u32 v6, {OP}, v1")
    if opt.get("opti", 0):
        a("s_add_u32 s53, s55, 4096")
        for h4 in range(4):
            for rt in range(2): a(f"buffer_load_dwordx4 {vr(OF+h4*8+rt*4,4)}, v{1 if rt == 0 else 6}, {WS}, s55 offen offset:{h4*1024} sc1")
        a(f"buffer_load_dword v9, v{vPR}, {WS}, s55 offen offset:1008 sc1")
        for h4 in range(4):
            for rt in range(2): a(f"buffer_load_dwordx4 {vr(OF+32+h4*8+rt*4,4)}, v{1 if rt == 0 else 6}, {WS}, s53 offen offset:{h4*1024} sc1")
        a("s_mov_b32 s46, 0x11111100")
        a("s_mov_b32 s50, 0")
        a("s_mov_b32 s51, 4")
        a("s_mov_b32 s52, s55")
    else:
        a("s_mov_b32 s46, 0x11111111")
        a("s_mov_b32 s50, -1")
        a("s_mov_b32 s51, -1")
    for i in range(32): a(f"v_mov_b32 v{AC2+i}, 0")
    a("s_mov_b32 s47, 0")
    a("s_mov_b32 s54, 0x76432105")
    a("s_mov_b32 s44, 0")
    def ldO(st, h4, rt, sreg):
        return ('ld', 'vm', f"buffer_load_dwordx4 {vr(OF+st*32+h4*8+rt*4,4)}, v{1 if rt == 0 else 6}, s[64:67], s{sreg} offen offset:{h4*1024} sc1", f"O{st}.{h4}.{rt}")
    def ldWo(hp, h4):
        return [('ld', 'lgkm', f"ds_read_b64_tr_b16 {vr(WO+hp*16+ct*4+jh*2,2)}, v{vO[ct]} offset:{(h4*32+16*jh)*128}", f"Wo{hp}.{ct}.{jh}") for ct in range(4) for jh in range(2)]
    def pick(st):
        return ["s_and_b32 s45, s46, s47", f"s_cselect_b32 s66, s38, 0", f"s_ff1_i32_b32 s{50+st}, s45", f"s_bitset0_b32 s46, s{50+st}",
                f"s_lshl_b32 s{52+st}, s{50+st}, 10", f"s_add_u32 s{52+st}, s{52+st}, s55"]
    def setvO(st):
        return [f"s_lshr_b32 s48, s54, s{50+st}", "s_and_b32 s48, s48, 15", "s_lshl_b32 s48, s48, 14"], \
               [f"v_add_u32 v{vO[0]}, s48, v{vO0}"] + [f"v_xor_b32 v{vO[ct]}, {ct*32}, v{vO[0]}" for ct in range(1, 4)]
    pro = [ldO(st, h4, rt, 52+st) for st in range(2) for h4 in range(4) for rt in range(2)] + ldWo(0, 0)
    body = []
    for st in range(2):
        body.append(('i', f"@EMP{st}"))
        body.append(('use', f"@CHK{st}", [] if opt.get("fine", 1) else [f"O{st}.{h4}.{rt}" for h4 in range(4) for rt in range(2)]))
        II = lambda l: [('i', x) for x in l]
        for h4 in range(4):
            hp = h4 & 1
            w = ldWo(hp ^ 1, (h4 + 1) & 3)
            gaps = [w[0:2], w[2:4], w[4:6], w[6:8], [], [], [], []]
            if h4 == 0:
                gaps[7] = II(["s_and_b32 s45, s46, s47", f"s_cbranch_scc0 F_GP{st}", f"F_GQ{st}:"])
            if h4 == 1:
                pk = pick(st)
                gaps[0] += II(pk[0:1]); gaps[1] += II(pk[1:2]); gaps[2] += II(pk[2:3]); gaps[3] += II(pk[4:5])
                gaps[4] = II([pk[5], pk[3]])
                gaps[5] = [ldO(st, 0, 0, 52+st)] + II(setvO(st ^ 1)[0][0:1])
                gaps[6] = [ldO(st, 0, 1, 52+st)] + II(setvO(st ^ 1)[0][1:2])
                gaps[7] = II(setvO(st ^ 1)[0][2:3])
            if h4 == 2:
                gaps[4] = [ldO(st, 1, 0, 52+st)] + II(setvO(st ^ 1)[1][0:1])
                gaps[5] = [ldO(st, 1, 1, 52+st)] + II(setvO(st ^ 1)[1][1:2])
                gaps[6] = II(setvO(st ^ 1)[1][2:4])
            if h4 == 3:
                gaps[4] = [ldO(st, 2, 0, 52+st)]
                gaps[5] = [ldO(st, 2, 1, 52+st)]
            n = 0
            for ct in range(4):
                for rt in range(2):
                    d = AC2 + (rt*4+ct)*4
                    tg = [f"Wo{hp}.{ct}.0", f"Wo{hp}.{ct}.1"]
                    if ct == 0 and rt == 0: tg += [f"Wo{hp}.3.0", f"Wo{hp}.3.1", f"O{st}.{h4}.0", f"O{st}.{h4}.1"]
                    body.append(('use', f"v_mfma_f32_16x16x32_bf16 {vr(d,4)}, {vr(WO+hp*16+ct*4,4)}, {vr(OF+st*32+h4*8+rt*4,4)}, {vr(d,4)}", tg))
                    body += gaps[n]; n += 1
        body += [ldO(st, 3, 0, 52+st), ldO(st, 3, 1, 52+st)]
    lines = insert_waits([(it[1], it[3]) for it in pro], body)
    a("s_mov_b32 s58, 0")
    a("s_mov_b32 s18, 1")
    a("s_branch F_GR0")
    if opt.get("g2wait") and G.stamp:
        a.label("F_DBGW")
        a("s_memrealtime s[40:41]")
        a("s_waitcnt lgkmcnt(0)")
        a("s_sub_u32 s40, s40, s70")
        a(f"s_cmp_lt_u32 s40, {opt['g2wait']}")
        a("s_cbranch_scc1 F_DBGW")
        T(a, 5)
    a(".p2align 6")
    a.label("F_GLOOP")
    for l in lines:
        if l.startswith("@EMP"):
            st = int(l[4:])
            a(f"s_cmp_lt_i32 s{50+st}, 0")
            a(f"s_cbranch_scc1 F_GE{st}")
        elif l.startswith("@CHK"):
            st = int(l[4:]); b = OF + st*32
            a.label(f"F_GC{st}")
            a.label(f"F_GK{st}")
            if G.stamp:
                a("s_memrealtime s[40:41]"); a("s_lshl_b32 s45, s44, 1"); a(f"s_add_u32 m0, s45, {st}"); a("s_waitcnt lgkmcnt(0)")
                a("v_writelane_b32 v240, s40, m0"); a(f"s_add_u32 m0, m0, 16"); a("s_nop 3"); a(f"v_writelane_b32 v240, s{50+st}, m0")
                a(f"s_add_u32 m0, m0, 16"); a("s_nop 3"); a(f"v_writelane_b32 v240, s58, m0")
        else: a(l)
    a("s_add_u32 s44, s44, 1")
    a("s_cmp_lt_u32 s44, 4")
    a("s_cbranch_scc1 F_GLOOP")
    T(a, 10)
    P = 48
    a("s_add_u32 s57, s56, 65536")
    a("s_waitcnt lgkmcnt(0)")
    for rt in range(2):
        for cp in range(2):
            b = P + (rt*2+cp)*4
            for k in range(2):
                s = AC2 + (rt*4+cp*2+k)*4
                a(f"v_cvt_pk_bf16_f32 v{b+2*k}, v{s}, v{s+1}")
                a(f"v_cvt_pk_bf16_f32 v{b+2*k+1}, v{s+2}, v{s+3}")
    for rt in range(2):
        for cp in range(2):
            b = P + (rt*2+cp)*4
            a(f"v_permlane16_swap_b32 v{b}, v{b+2}")
            a(f"v_permlane16_swap_b32 v{b+1}, v{b+3}")
            a(f"buffer_store_dwordx4 {vr(b,4)}, v{vOUT}, s[60:63], s{56+rt} offen offset:{cp*64}{OUTF}")
    stamp_out(a)
    a("s_endpgm")
    gen_C_tail(a, vGD, vONE, vCV)
    def refresh_tail():
        a("s_waitcnt lgkmcnt(0)")
        a("v_cmp_ne_u32 s[40:41], 1, v10")
        a("s_lshr_b32 s17, s17, 2")
        a("s_or_b32 s45, s40, s41")
        a("s_lshr_b32 s40, s45, 1")
        a("s_or_b32 s45, s45, s40")
        a("s_lshr_b32 s40, s45, 2")
        a("s_or_b32 s45, s45, s40")
        a("s_andn2_b32 s47, s17, s45")
        a(f"s_cmp_gt_u32 s58, {SPIN_MAX}")
        a("s_cselect_b32 s47, -1, s47")
        a("s_and_b32 s47, s47, s46")
    def refresh_head():
        a("s_mov_b32 s17, 0")
        a("s_atomic_add s17, s[14:15], 0 glc")
        a("ds_read_b32 v10, v211")
    for st in range(2):
        a.label(f"F_GP{st}")
        a("s_cmp_eq_u32 s46, 0")
        a(f"s_cbranch_scc1 F_GQ{st}")
        a(f"s_cmp_lt_i32 s{50+(st^1)}, 0")
        a(f"s_cbranch_scc1 F_GQ{st}")
        refresh_head(); refresh_tail()
        a(f"s_branch F_GQ{st}")
        a.label(f"F_GS{st}")
        a("s_cmp_eq_u32 s18, 0")
        a(f"s_cbranch_scc1 F_GT{st}")
        a(f"s_waitcnt vmcnt({10 if WOL2 else 0})")
        a("s_atomic_add s16, s[12:13], 0")
        a("s_mov_b32 s18, 0")
        if WOL2:
            a("s_waitcnt vmcnt(0)")
            a(f"ds_write_b32 v{vXD}, v{vONE} offset:{L_EC - L_XD}")
        a.label(f"F_GT{st}")
        a(f"s_sleep {opt.get('sl3', 6)}")
        a.label(f"F_GE{st}")
        a("s_add_u32 s58, s58, 1")
        refresh_head()
        a.label(f"F_GR{st}")
        refresh_tail()
        a(f"s_cbranch_scc0 F_GS{st}")
        if opt.get("st2"): pass
        elif st == 0: T(a, 9)
        else: T(a, 8)
        for x in pick(st): a(x)
        for h4 in range(4):
            for rt in range(2): a(ldO(st, h4, rt, 52+st)[2].replace("s[64:67]", WS))
        if st == 0:
            a("s_cmp_eq_u32 s18, 0")
            a("s_cbranch_scc1 F_GU")
            a(f"s_waitcnt vmcnt({18 if WOL2 else 8})")
            a("s_atomic_add s16, s[12:13], 0")
            a("s_mov_b32 s18, 0")
            if WOL2:
                a("s_waitcnt vmcnt(8)")
                a(f"ds_write_b32 v{vXD}, v{vONE} offset:{L_EC - L_XD}")
            a.label("F_GU")
        for x in setvO(st)[0] + setvO(st)[1]: a(x)
        for it in ldWo(0, 0): a(it[2])
        a(f"s_cmp_lt_i32 s{50+(st^1)}, 0")
        a(f"s_cbranch_scc0 F_GN{st}")
        for x in pick(st ^ 1): a(x)
        for h4 in range(4):
            for rt in range(2): a(ldO(st ^ 1, h4, rt, 52+(st^1))[2])
        if not opt.get("fine", 1): a("s_waitcnt vmcnt(8)")
        a(f"s_branch F_GC{st}")
        a.label(f"F_GN{st}")
        a("s_waitcnt vmcnt(0)")
        a(f"s_branch F_GC{st}")

def kv_issue(a, KL, opt):
    a("s_lshl_b32 s59, s30, 12")
    for p in range(16):
        if p % 2 == 0:
            a("s_and_b32 s59, s59, 0x7fff")
            a("s_add_u32 s40, s59, s53")
        a(f"buffer_load_dwordx4 {vr(KL+4*p,4)}, v1, {WS}, s40 offen offset:{(p&1)*2048} sc1")
        if p & 1 and p < 15: a("s_add_u32 s59, s59, 4096")

def wo_c(a, ks):
    for k in ks:
        a(f"s_add_u32 m0, s68, {5*8192 + k*4096}")
        a(f"s_add_u32 s40, s69, {(7*64 + k*32)*2048}")
        a("buffer_load_dwordx4 v205, s[4:7], s40 offen lds")

def gen_C_tail(a, vGD, vONE, vCV):
    a.label("F_CNB0")
    a(f"ds_write_b32 v{vGD}, v{vONE} offset:{L_G14 - L_GD}")
    lds_wait(a, "F_WS15", vCV, 15, sleep=0, off=L_S15 - L_M)
    a("s_branch F_CB0")
    a.label("F_CNB1")
    a(f"ds_write_b32 v{vGD}, v{vONE}")
    a("s_branch F_CB1")

def merge(groups, tail, extras):
    out = []; ex = list(extras)
    nd = sum(1 for g in groups for it in g if it[0] == 'ld')
    per = -(-len(ex) // max(nd, 1))
    def plain(e): return isinstance(e, tuple)
    for g in groups:
        for k, it in enumerate(g):
            out.append(it)
            last = (k == len(g) - 1)
            if it[0] == 'ld':
                for _ in range(per):
                    if ex and (plain(ex[0]) or last):
                        e = ex.pop(0)
                        if isinstance(e, list): out += e
                        else: out.append(e)
    out += tail
    for e in ex:
        if isinstance(e, list): out += e
        else: out.append(e)
    return out

def I(s): return ('i', s)
def mksrd(b, size):
    return [I(f"s_mov_b32 s40, s{b}"), I(f"s_mov_b32 s41, s{b+1}"), I(f"s_mov_b32 s42, {hex(size)}"), I("s_mov_b32 s43, 0x00020000")]

def gen_L(a, opt):
    NT = " nt" if opt.get("nt", 1) else ""
    a("s_sub_u32 s34, s3, 4")
    a("v_lshrrev_b32 v2, 3, v0")
    a("v_and_b32 v4, 7, v0")
    if opt.get("cpf", 1):
        a("s_getpc_b64 s[66:67]")
        a("F_PC:")
        a("s_lshl_b32 s40, s29, 10")
        a("s_lshl_b32 s41, s34, 8")
        a("s_add_u32 s40, s40, s41")
        a("v_and_b32 v7, 1, v0")
        a("v_lshlrev_b32 v7, 7, v7")
        a("v_add_u32 v7, s40, v7")
        a("v_min_u32 v7, F_END-F_PC, v7")
        a("global_load_dword v250, v7, s[66:67]")
    a("v_lshlrev_b32 v8, 11, v4")
    a("v_and_b32 v9, 15, v0")
    a("v_min_u32 v9, 11, v9")
    a("v_lshrrev_b32 v7, 2, v9")
    a("v_and_b32 v9, 3, v9")
    a("v_lshlrev_b32 v9, 7, v9")
    a("v_lshl_add_u32 v9, v7, 11, v9")
    a("s_and_b32 s100, s28, 1")
    a("s_lshr_b32 s101, s28, 1")
    a("s_lshl_b32 s40, s100, 21")
    a("s_lshl_b32 s41, s101, 19")
    a("s_add_u32 s99, s40, s41")
    a("s_lshl_b32 s40, s29, 14")
    a("s_lshl_b32 s41, s34, 7")
    a("s_add_u32 s42, s40, s41")
    a("s_add_u32 s42, s42, s99")
    a("s_mul_i32 s98, s100, 6144")
    a("s_lshl_b32 s41, s101, 9")
    a("s_add_u32 s98, s98, s41")
    a("s_lshl_b32 s43, s29, 2")
    a("s_add_u32 s43, s43, s34")
    a("s_mul_i32 s43, s43, 12288")
    a("s_add_u32 s43, s43, s98")
    if opt.get("map16", 1):
        a("v_min_u32 v9, 5, v4")
        a("v_lshrrev_b32 v7, 1, v9")
        a("v_and_b32 v9, 1, v9")
        a("v_lshlrev_b32 v9, 7, v9")
        a("v_lshl_add_u32 v19, v7, 11, v9")
        a("v_and_b32 v7, 1, v2")
        a("v_mul_u32_u24 v7, 6144, v7")
        a("v_add_u32 v9, v19, v7")
        a("s_lshl_b32 s98, s28, 8")
        a("s_lshl_b32 s43, s29, 2")
        a("s_add_u32 s43, s43, s34")
        a("s_mul_i32 s43, s43, 12288")
        a("s_add_u32 s43, s43, s98")
    a(f"s_mov_b32 s46, {hex(4 << 20)}")
    a("s_mov_b32 s47, 0x00020000")
    a(f"s_mov_b32 s50, {hex(6 << 20)}")
    a("s_mov_b32 s51, 0x00020000")
    a("s_lshl_b32 s40, s34, 3")
    a("v_add_u32 v3, s40, v2")
    a("v_lshrrev_b32 v5, 4, v0")
    a("s_and_b32 s40, s34, 1")
    a("s_lshl_b32 s41, s40, 2")
    a("v_add_u32 v6, s41, v5")
    a("v_xor_b32 v6, v6, v4")
    a("v_lshlrev_b32 v6, 4, v6")
    a("v_lshl_add_u32 v10, v3, 11, v6")
    a("v_and_b32 v6, 1, v5")
    a("v_lshlrev_b32 v6, 1, v6")
    a("v_or_b32 v6, s41, v6")
    a("v_xor_b32 v6, v6, v4")
    a("v_lshlrev_b32 v6, 4, v6")
    a("v_mul_u32_u24 v11, 6144, v3")
    a("v_add_u32 v11, v11, v6")
    a("s_lshl_b32 s52, s30, 18")
    for jj in range(1, 4): a(f"s_add_u32 s{52+jj}, s52, {jj*65536 - jj*1024}")
    a("s_lshl_b32 s56, s31, 7")
    Bp = [(0,0),(1,0),(2,0),(0,1),(1,1),(2,1)]
    for k, (seg, half) in enumerate(Bp):
        if k: a(f"s_add_u32 s{56+k}, s56, {seg*2048 + half*32*6144 - (k%4)*1024}")
    a(f"s_mul_i32 s62, s34, {WSEG}")
    a("s_mov_b32 s63, 393216")
    a("s_waitcnt lgkmcnt(0)")
    T(a, 9)
    a("s_mov_b64 s[44:45], s[4:5]")
    a("s_mov_b64 s[48:49], s[6:7]")
    if opt.get("pf0", 1):
        a("buffer_load_dword v250, v9, s[48:51], s43 offen")
        a("buffer_load_dword v250, v8, s[44:47], s42 offen")
    def stage(t):
        base = ((t + 1) % 3) * STAGE
        n = [0]
        def d(v, s, so, off):
            n[0] += 1
            return ('ld', 'vm', f"buffer_load_dwordx4 v{v}, {s}, s{so} offen offset:{off} lds", f"S{t}.{n[0]-1}")
        g1 = [I(f"s_add_u32 m0, s62, {base + 4096}")] + [d(11, "s[48:51]", 56+k, k*1024) for k in (1, 2, 0, 3)]
        g0 = [I(f"s_add_u32 m0, s62, {base}")] + [d(10, "s[44:47]", 52+jj, jj*1024) for jj in range(4)]
        g2 = [I(f"s_add_u32 m0, s62, {base + 8192}")] + [d(11, "s[48:51]", 56+k, (k-4)*1024) for k in (4, 5)]
        return [g1, g0, g2], [I("v_add_u32 v10, 128, v10"), I("v_add_u32 v11, s63, v11")]
    def tags(t): return [f"S{t}.{n}" for n in range(10)]
    pro = merge(*stage(0), []) + ([] if opt.get("b0early", 0) else merge(*stage(1), []))
    for it in pro: a(it[1] if it[0] == 'i' else it[2])
    T(a, 8)
    common2(a)
    prolist = [(it[1], it[3]) for it in pro if it[0] == 'ld']
    a("v_lshlrev_b32 v6, 1, v5")
    a("v_xor_b32 v6, v6, v4")
    a("v_lshlrev_b32 v6, 4, v6")
    a("v_lshl_add_u32 v12, v2, 11, v6")
    a("v_mov_b32 v13, 0")
    a("s_lshr_b32 s35, s29, 4")
    a("s_lshl_b32 s35, s35, 3")
    a("s_add_u32 s35, s35, s28")
    a("s_lshl_b32 s35, s35, 4")
    a("s_and_b32 s40, s29, 15")
    a("s_add_u32 s35, s35, s40")
    if not opt.get("cgx", 0): a("s_mov_b32 s35, s2")
    a("s_lshl_b32 s35, s35, 2")
    a("s_add_u32 s35, s35, s34")
    a("s_and_b32 s96, s29, 3")
    a("s_waitcnt lgkmcnt(0)")
    srd(a, 36, 26, WS_SIZE)
    srd(a, 64, 24, 256)

    ex = {t: [] for t in range(-2, 17)}
    bdep = {t: [] for t in range(0, 17)}
    tT = opt.get("tT", 5)
    ex[tT].append(('ld', 'vm', "buffer_load_dword v14, v13, s[64:67], 0 offen sc1", "TOK"))
    ex[tT+2].append([('use', "v_readfirstlane_b32 s68, v14", ["TOK"]), I("s_mov_b32 s69, 0"),
         I("F_TK:"), I("s_cmp_ge_u32 s68, 4"), I("s_cbranch_scc1 F_TKX"), I("s_sleep 8"),
         I("buffer_load_dword v14, v13, s[64:67], 0 offen sc1"), I("s_waitcnt vmcnt(0)"), I("v_readfirstlane_b32 s68, v14"),
         I("s_add_u32 s69, s69, 1"), I(f"s_cmp_lt_u32 s69, {SPIN_MAX}"), I("s_cbranch_scc1 F_TK"), I("F_TKX:")])
    if opt.get("pf", 1):
        ex[-2] = [I(x) for x in ["s_lshr_b32 s69, s29, 2",
              "s_mul_i32 s40, s96, 3", "s_add_u32 s40, s40, 4",
              "s_add_u32 s41, s40, s34", "s_lshl_b32 s41, s41, 7", "s_add_u32 s99, s99, s41", "s_lshl_b32 s41, s69, 16", "s_add_u32 s99, s99, s41",
              "s_lshl_b32 s40, s40, 5", "s_mul_i32 s41, s69, 12", "s_add_u32 s40, s40, s41", "s_lshl_b32 s41, s34, 2", "s_add_u32 s40, s40, s41",
              "s_mul_i32 s40, s40, 12288", "s_add_u32 s98, s98, s40",
              "s_lshl_b32 s100, s100, 10", "s_lshl_b32 s101, s101, 19", "s_add_u32 s100, s100, s101", "s_lshl_b32 s41, s29, 14", "s_add_u32 s100, s100, s41",
              "v_and_b32 v16, 31, v0", "v_lshlrev_b32 v16, 11, v16", "v_mul_u32_u24 v17, 6144, v2" if opt.get("map16", 1) else "v_mul_u32_u24 v17, 12288, v5", "v_add_u32 v17, v17, v19" if opt.get("map16", 1) else "v_add_u32 v17, v17, v9",
              "v_lshlrev_b32 v18, 7, v4", "v_lshl_add_u32 v18, v2, 11, v18"]] + ex[-2]
        if opt.get("spf"):
            G.spf = True
        for sg, t in enumerate(opt.get("pft", (-2, -1, 3, 6)) if not opt.get("spf") else ()):
            ex[t].append([I(f"s_cmp_lg_u32 s96, {sg}"), I(f"s_cbranch_scc1 F_PF{sg}X"), I("s_cmp_eq_u32 s34, 3"), I(f"s_cbranch_scc1 F_PF{sg}X"),
                          I("buffer_load_dword v250, v17, s[48:51], s98 offen"), I("buffer_load_dword v250, v16, s[44:47], s99 offen"), I(f"F_PF{sg}X:")])
        for sg, t in enumerate(opt.get("wot", (-2, -1, 3, 6))):
            ex[t].append([I(f"s_cmp_lg_u32 s96, {sg}"), I(f"s_cbranch_scc1 F_PW{sg}X"), I("s_cmp_lg_u32 s34, 3"), I(f"s_cbranch_scc1 F_PW{sg}X")] + mksrd(8, 2 << 20) +
                         [I("buffer_load_dword v250, v18, s[40:43], s100 offen"), I(f"F_PW{sg}X:")])
    tC = opt.get("tC", 4); chunk = opt.get("chunk", 52)
    W8 = 32; WF = 36; KF = 44; VFp = 64; U = 80; UN = 96
    ex[-2] += [I("s_lshl_b32 s40, s34, 1"), I("v_xor_b32 v20, s40, v4"), I("v_lshlrev_b32 v20, 4, v20"), I("v_lshl_add_u32 v20, v2, 11, v20"),
               I("s_lshr_b32 s40, s2, 4"), I("s_lshl_b32 s40, s40, 18"), I("s_and_b32 s41, s2, 15"), I("s_lshl_b32 s41, s41, 7"), I("s_add_u32 s40, s40, s41"),
               I("v_xor_b32 v21, 6, v4"), I("v_lshlrev_b32 v21, 4, v21"), I("v_lshl_add_u32 v21, v2, 11, v21"), I("v_add_u32 v21, s40, v21"), I("v_subrev_u32 v21, 6144, v21"),
               I("s_lshl_b32 s41, s34, 15"), I("s_add_u32 s40, s40, s41"), I("v_add_u32 v20, s40, v20"),
               I("v_and_b32 v22, 3, v2"), I("v_xor_b32 v22, s34, v22"), I("v_lshlrev_b32 v22, 5, v22"), I("v_lshl_add_u32 v22, v4, 2, v22"), I("v_lshl_add_u32 v22, v2, 11, v22"), I(f"v_add_u32 v22, {L_K}, v22"),
               I("v_add_u32 v23, 3, v2"), I("v_and_b32 v23, 3, v23"), I("v_xor_b32 v23, s34, v23"), I("v_lshlrev_b32 v23, 5, v23"), I("v_lshl_add_u32 v23, v4, 2, v23"), I("v_lshl_add_u32 v23, v2, 11, v23"), I(f"v_add_u32 v23, {L_K - 384}, v23"),
               I("s_and_b32 s40, s2, 15"), I("s_lshl_b32 s40, s40, 6"), I("s_lshl_b32 s41, s34, 4"), I("s_add_u32 s40, s40, s41"),
               I("v_lshlrev_b32 v24, 1, v4"), I("v_add_u32 v24, s40, v24"),
               I(f"v_mul_u32_u24 v25, {CP}, v24"), I("v_lshlrev_b32 v24, 3, v24"),
               I("s_lshr_b32 s40, s2, 4"), I("s_lshl_b32 s40, s40, 3"), I("v_add_u32 v26, s40, v2"), I("v_lshl_add_u32 v25, v26, 4, v25")]
    ex[2 if opt.get("lateset", 1) else -2] += [I(f"v_mov_b32 v{r}, 0") for r in range(KF, U)]
    tmp = Asm(); handoff_addrs_L(tmp)
    ex[0] += [I("s_mov_b32 s7, 0xffff0000")]
    for sg, t in enumerate(opt.get("kvt", (0, 1, -1, 1))):
        g = [I(f"s_cmp_lg_u32 s96, {sg}"), I(f"s_cbranch_scc1 F_KV{sg}X"), I("s_lshl_b32 s69, s34, 11")]
        for which, (ptr, lb) in enumerate(((12, L_K), (14, L_V))):
            g += mksrd(ptr, 4 << 20)
            if which == 0:
                g += [I(f"s_mov_b32 m0, {L_KH}"), I("s_mov_b64 exec, 0xffffff"), I(f"buffer_load_dwordx4 v21, s[40:43], 0 offen{NT} lds"), I("s_mov_b64 exec, -1")]
            for hf in range(2):
                g += [I(f"s_add_u32 m0, s69, {lb + hf*8192}"), I(f"s_mov_b32 s97, {hf*131072}"),
                      I(f"buffer_load_dwordx4 v20, s[40:43], s97 offen{NT} lds"), I(f"s_mov_b32 s97, {hf*131072 + 16384 - 1024}"),
                      I(f"buffer_load_dwordx4 v20, s[40:43], s97 offen offset:1024{NT} lds")]
        g += mksrd(16, 8192) + [I(f"buffer_load_dwordx4 {vr(W8,4)}, v24, s[40:43], 0 offen"), I(f"F_KV{sg}X:")]
        if not opt.get("cheat"): ex[t] += [[]]*2 + [g]
        assert t + 3 <= tC
    L = []
    for cc in range(2):
        rd = [('ld', 'lgkm', f"ds_read_u16_d16_hi v{KF+r}, v{23 if r < 3 else 22} offset:{(r if r < 3 else r-3)*128 + cc*2}", f"k{r}") for r in range(19)]
        rv = [('ld', 'lgkm', f"ds_read_u16_d16_hi v{VFp+r}, v22 offset:{16384 + r*128 + cc*2}", f"v{r}") for r in range(16)]
        L += rd[:12]
        for j in range(4):
            src = W8 + 2*cc + (j >> 1)
            L.append(I(f"v_and_b32 v{WF+j}, s7, v{src}" if j & 1 else f"v_lshlrev_b32 v{WF+j}, 16, v{src}"))
        rest = rd[12:] + rv
        for s in range(16):
            L.append(('use', f"v_mul_f32 v{U+s}, v{WF+3}, v{KF+s}", [f"k{min(s+7, 18)}" if s % 8 == 0 else f"k{s}"]))
            if rest: L.append(rest.pop(0))
        for j in (2, 1, 0):
            for s in range(16):
                L.append(('use', f"v_fmac_f32 v{U+s}, v{WF+j}, v{KF+s+3-j}", ["k18"]))
                if rest: L.append(rest.pop(0))
        for s in range(16): L.append(('use', f"v_mul_f32 v{U+s}, v{U+s}, v{VFp+s}", ["v15"]))
        for rho in range(2):
            for i, (lo, hi) in enumerate(((12, 8), (4, 0), (14, 10), (6, 2))):
                L.append(I(f"v_cvt_pk_bf16_f32 v{UN+8*cc+4*rho+i}, v{U+lo+rho}, v{U+hi+rho}"))
    g = []
    for cc in range(2):
        g.append(I(f"s_mov_b32 s69, {hex(WS_UT + cc*CP)}"))
        for rho in range(2):
            g.append(('ld', 'vm', f"buffer_store_dwordx4 {vr(UN+8*cc+4*rho,4)}, v25, {WS}, s69 offen offset:{rho*2048} sc1", f"us{cc}.{rho}"))
    if not opt.get("ulate"): L.append(g)
    gU = g
    def cond(name, times, items):
        for sg, t in enumerate(times):
            ex[t] += [[]]*2 + [[I(f"s_cmp_lg_u32 s96, {sg}"), I(f"s_cbranch_scc1 F_{name}{sg}X")] + [I(x.replace("@", f"F_{name}{sg}X")) for x in items] + [I(f"F_{name}{sg}X:")]]
    clr = [f"buffer_store_dwordx4 v[112:115], v1, {WS}, s4 offen sc1", "s_mov_b32 exec_lo, 0x00010001", "s_mov_b32 exec_hi, 0x00010001",
           f"buffer_store_dwordx4 v[112:115], v27, {WS}, s5 offen sc1", "s_mov_b64 exec, -1"]
    for i in range(4):
        clr.append(f"buffer_store_dwordx4 v[112:115], v1, {WS}, s6 offen sc1")
        if i < 3: clr.append(f"s_add_u32 s6, s6, {OP}")
    clr += [f"s_mul_i32 s69, s35, {CP}", f"s_add_u32 s69, s69, {hex(WS_YT)}"]
    for ip in range(4): clr.append(f"buffer_store_dwordx4 v[112:115], v1, {WS}, s69 offen offset:{ip*1024} sc1")
    if False: cond("CL", opt.get("clt", (3, 5, 1, 2)), clr)
    ex[-2] += [I(x) for x in ["s_lshr_b32 s40, s2, 4", "s_lshl_b32 s40, s40, 4", "s_lshl_b32 s41, s34, 3", "s_add_u32 s40, s40, s41",
        "v_add_u32 v28, s40, v2", f"v_mul_u32_u24 v232, {8*CP}, v4", "v_lshl_add_u32 v232, v28, 4, v232", "v_lshrrev_b32 v29, 6, v28", "v_lshlrev_b32 v29, 9, v29",
        "v_and_b32 v30, 15, v28", "v_lshl_add_u32 v29, v30, 4, v29", "v_bfe_u32 v30, v28, 4, 2", "v_lshl_add_u32 v29, v30, 2, v29", "v_lshlrev_b32 v30, 4, v4",
        "v_lshl_add_u32 v234, v29, 11, v30", "v_lshl_add_u32 v233, v29, 12, v30"]]
    ql = ["s_cmp_ge_u32 s34, 2", "s_cbranch_scc1 @"] + [x[1] for x in mksrd(10, 4 << 20)] + ["s_and_b32 s69, s2, 15", "s_lshl_b32 s69, s69, 7"]
    for j in range(8):
        hf, r = j >> 2, j & 3
        ql.append(f"s_add_u32 s97, s69, {(r>>1)*4096 + hf*256*2048}")
        ql.append(f"buffer_load_dwordx4 {vr(QREG+4*j,4)}, v234, s[40:43], s97 offen offset:{(r&1)*2048}{NT}")
    G.ql = ql
    if not opt.get("qlate", 2): cond("Q", opt.get("qt", (1, 1, -1, 0)), ql)
    t = tC
    i = 0
    while i < len(L):
        ck = opt.get("chunk0", chunk) if i == 0 else chunk
        if not opt.get("cheat"): ex[t] += L[i:i+ck]
        i += ck; t += 1
    tLast = t - 1
    tB = tLast + 1 + opt.get("fad", 2)
    assert tB <= 13, tB
    tmp = Asm(); tmp("s_and_b32 s69, s2, 15"); tmp("s_lshl_b32 s69, s69, 2"); tmp("s_add_u32 s69, s69, s34"); ctr_addr(tmp, 4, 69, CT_U); tmp("s_mov_b32 s6, 1")
    if not opt.get("ulate"):
        ex[tB-1] = [[I(l) for l in tmp.lines] + [('use', "s_atomic_add s6, s[4:5], 0", ["us1.1"])]] + ex[tB-1]
    gA = [I(l) for l in tmp.lines] + [('use', "s_atomic_add s6, s[4:5], 0", ["us1.1"]), I("s_waitcnt lgkmcnt(0)")]
    ht = opt.get("ht", (9, 10, 11, 12))
    assert min(ht) > tLast and min(ht) > max(opt.get("pft", (-2, -1, 3, 6)))
    ex[min(ht)] = [I("s_lshl_b32 s98, s35, 12"), I(f"s_mul_i32 s99, s34, {HSZ}"), I(f"s_add_u32 s99, s99, {L_H}")] + ex[min(ht)]
    hd = [x[1] for x in mksrd(18, 4 << 20)]
    for j in range(4):
        hd += ["s_add_u32 m0, s99, 32", f"buffer_load_dwordx4 v1, s[40:43], s98 offen offset:{j*1024} lds",
               f"s_add_u32 m0, s99, {H1+36}", f"buffer_load_dwordx4 v1, s[40:43], s98 offen offset:{j*1024} lds"]
    if not opt.get("hlate", 1): cond("H", ht, hd)
    cs = conv_setup()
    if opt.get("bal", 1):
        k = cs.index("s_waitcnt lgkmcnt(0)")
        k1 = cs.index("v_and_b32 v34, 3, v0")
        ex[11] += [[I(x) for x in cs[:8]]] + [I(x) for x in cs[8:k1]]
        ex[12] += [I(x) for x in cs[k1:]]
    else:
        ex[12] += [[I(x) for x in cs[:8]]] + [I(x) for x in cs[8:]]
        ex[11] += [I(f"v_mov_b32 v{116+i}, 0") for i in range(44)]
    if opt.get("ulate"):
        if opt["ulate"] == 1:
            ex[12] += [gU]
            G.ulate = gA + [I(f"v_mov_b32 v{96+i}, 0") for i in range(20)]
        else:
            G.ulate = gU + gA[:-2]
    elif not opt.get("bal", 1):
        ex[10] += [I(f"v_mov_b32 v{96+i}, 0") for i in range(20)]
    ex[13] += [I("s_lshl_b32 s97, s34, 2"), I(f"s_add_u32 s97, s97, {L_S15}"), I("v_mov_b32 v28, s97"), I("v_mov_b32 v29, 1"),
               ('use', "ds_write_b32 v28, v29", tags(15))]
    if opt.get("ulate"): ex[13] += G.ulate
    if opt.get("hlate", 1) and not opt.get("aonly"): ex[13] += [I(x) for x in hd]
    if opt.get("qlate", 2) == 2: ex[13] += [I(x.replace("@", "F_QL2")) for x in ql] + [I("F_QL2:")]
    if opt.get("spf"):
        rest = spf_list(22, 98, 92, 97)[opt.get("spc", 18):]
        ex[-2].append([I(x) for x in ["s_mov_b64 s[94:95], s[22:23]" if False else "s_nop 0"] + spf_setup(34, 90, 98, 40, 41)])
        rest = spf_list(90, 98, 88, 97)[opt.get("spc", 18):]
        slots = opt.get("sps", (-2, -1, 0, 1, 2, 3)); per = -(-len(rest) // len(slots))
        for k, t in enumerate(slots):
            ex[t] += [[]]*3 + [[I(x) for grp in rest[k*per:(k+1)*per] for x in grp]]
    if opt.get("b0early", 0):
        g, tl = stage(1)
        nb0 = opt.get("nb0", 1)
        plain_ = [e for e in ex[-2] if isinstance(e, tuple)]; grp_ = [e for e in ex[-2] if isinstance(e, list)]
        k = opt.get("k0", 60)
        body = merge(g[:nb0], [], plain_[:k]) + [('use', "s_barrier", tags(0))] + merge(g[nb0:], tl, plain_[k:] + grp_) + merge(*stage(2), ex[-1])
    else:
        body = merge([], [], ex[-2]) + [('use', "s_barrier", tags(0))] + merge(*stage(2), ex[-1])
    for t in range(14):
        body.append(('use', "s_barrier", tags(t+1) + bdep[t+1]))
        if t + 3 <= 15: body += merge(*stage(t+3), ex[t])
        else: body += merge([], [], ex[t])
    lines = insert_waits(prolist, body, loop=False)
    nb = 0
    for l in lines:
        if l == "s_barrier" and G.stamp:
            a("s_memrealtime s[72:73]"); a("s_waitcnt lgkmcnt(0)"); a(f"v_writelane_b32 v240, s72, {nb}")
            a(l)
            a("s_memrealtime s[72:73]"); a("s_waitcnt lgkmcnt(0)"); a(f"v_writelane_b32 v240, s72, {32+nb}")
            nb += 1
        else:
            a(l)
    if opt.get("g1only"):
        stamp_out(a); a("s_endpgm"); return
    gen_conv(a, opt)

def conv_setup():
    a = Asm()
    vA, vB = 6, 7; ACC = 96
    a("s_add_u32 s4, s18, s98")
    a("s_addc_u32 s5, s19, 0")
    a("s_load_dword s6, s[4:5], 0")
    a("s_lshl_b32 s7, s35, 1")
    a("s_and_b32 s7, s7, 0xfffffffc")
    a("s_add_u32 s4, s20, s7")
    a("s_addc_u32 s5, s21, 0")
    a("s_load_dword s7, s[4:5], 0")
    a(f"s_mul_i32 s97, s34, {USZ}")
    a(f"s_add_u32 s97, s97, {L_U}")
    a("v_add_u32 v32, s97, v1")
    a(f"v_add_u32 v33, {URHO-256}, v32")
    a("v_cmp_gt_u32 vcc, 16, v0")
    a("v_and_b32 v34, 1, v0")
    a("v_lshlrev_b32 v34, 4, v34")
    a("v_cndmask_b32 v32, v33, v32, vcc")
    a("v_bfe_u32 v35, v0, 1, 1")
    a(f"v_mul_u32_u24 v35, {H1}, v35")
    a("v_cmp_gt_u32 vcc, 32, v0")
    a("v_add3_u32 v34, v34, v35, s99")
    for i in range(4): a(f"v_mov_b32 v{36+i}, 0")
    a("v_cndmask_b32 v32, v34, v32, vcc")
    a("v_and_b32 v34, 3, v0")
    a("v_lshlrev_b32 v30, 2, v34")
    a(f"v_add_u32 v30, {L_M}, v30")
    a("v_bfe_u32 v35, v0, 2, 2")
    a("v_add_u32 v34, v34, v35")
    a("v_lshlrev_b32 v34, 3, v34")
    a("v_lshl_add_u32 v34, v5, 5, v34")
    a("s_add_u32 s69, s99, 8")
    a(f"v_add_u32 v{vA}, s69, v34")
    a("v_and_b32 v34, 15, v0")
    a("v_sub_u32 v34, v34, v5")
    a("v_lshlrev_b32 v34, 4, v34")
    a(f"s_add_u32 s69, s97, {256-64}")
    a(f"v_add_u32 v{vB}, s69, v34")
    a("v_mov_b32 v5, s99")
    a("v_subrev_u32 v8, 16, v0")
    a("v_add_u32 v9, 47, v0")
    a("v_cmp_gt_u32 vcc, 16, v0")
    a("v_mov_b32 v34, 63")
    a("s_lshl_b32 s69, s34, 2")
    a("v_cndmask_b32 v8, v8, v9, vcc")
    a("v_cmp_eq_u32 vcc, 0, v0")
    a(f"s_add_u32 s69, s69, {L_CV}")
    a("v_mov_b32 v9, s69")
    a("v_cndmask_b32 v8, v8, v34, vcc")
    a("v_lshlrev_b32 v8, 2, v8")
    a("s_waitcnt lgkmcnt(0)")
    a("s_lshl_b32 s6, s6, 16")
    a("s_and_b32 s69, s35, 1")
    a("s_lshl_b32 s69, s69, 4")
    a("s_lshr_b32 s7, s7, s69")
    a("s_lshl_b32 s7, s7, 16")
    a("v_mov_b32 v33, s6")
    a("v_add_f32 v33, s7, v33")
    a("v_cvt_pk_bf16_f32 v33, v33, v33")
    return a.lines

def handoff_addrs_L(a):
    t = Asm(); handoff_addrs(t, 34, 4)
    import re
    for l in t.lines: a(re.sub(r"\bs8\b", "s69", l))

def gen_conv(a, opt):
    NT = " nt" if opt.get("nt", 1) else ""
    T(a, 1)
    vA, vB = 6, 7
    AF = 16; BF = 48; ACC = 96
    a(f"s_mul_i32 s52, s34, {USZ}")
    a(f"s_add_u32 s52, s52, {L_U}")
    a(f"s_mul_i32 s63, s35, {CP}")
    a(f"s_add_u32 s53, s63, {hex(WS_UT)}")
    srd(a, 40, 8, 2 << 20)
    a("s_lshl_b32 s62, s34, 10")
    a("s_lshl_b32 s100, s34, 14")
    a("s_lshl_b32 s101, s33, 7")
    a("s_add_u32 s100, s100, s101")
    def woc(chs):
        for c in chs:
            for hf in range(2):
                a(f"s_add_u32 m0, s62, {c*8192 + hf*4096}")
                a(f"s_add_u32 s101, s100, {(((c+2)%12)*64 + hf*32)*2048}")
                a("buffer_load_dwordx4 v12, s[40:43], s101 offen lds")
    UL = opt.get("ulate", 0)
    def ublock():
        a("s_lshr_b32 s69, s35, 4")
        ctr_addr(a, 54, 69, CT_U)
        ctr_wait(a, "F_P1", 54, 69, 16, 101, sleep=4)
        T(a, 5)
        a("s_add_u32 m0, s52, 256")
        for j in range(2): a(f"buffer_load_dwordx4 v1, {WS}, s53 offen offset:{j*1024} sc1 lds")
        a(f"s_add_u32 m0, s52, {URHO+256-2048}")
        for j in range(2, 4): a(f"buffer_load_dwordx4 v1, {WS}, s53 offen offset:{j*1024} sc1 lds")
    if UL == 2:
        a("s_waitcnt vmcnt(8)")
        a("s_atomic_add s6, s[4:5], 0")
        for i in range(20): a(f"v_mov_b32 v{96+i}, 0")
    if UL != 2: ublock()
    a("ds_write_b128 v32, v[36:39]")
    a(f"ds_write_b32 v5, v36 offset:{H1+32}")
    woc((10, 11))
    if opt.get("bal", 1):
        for i in range(64): a(f"v_mov_b32 v{ACC+i}, 0")
    lds_wait(a, "F_WG14", 30, 11, off=L_G14 - L_M)
    WL = opt.get("wloop", 0)
    woc(range(0, 2) if WL else range(0, 5))
    if UL == 2 and opt.get("upos", 0) == 0: ublock()
    WM = opt.get("wmid", 0)
    if WL:
        lds_wait(a, "F_WGDx", 30, 11, off=L_GD - L_M)
        a("s_add_u32 s56, s62, 16384")
        a(f"s_add_u32 s57, s100, {4*64*2048}")
    elif not WM:
        lds_wait(a, "F_WGDx", 30, 11, off=L_GD - L_M)
        woc(range(5, 10))
    else:
        a("v_mov_b32 v235, v30")
    if UL == 2 and opt.get("upos", 0) == 1: ublock()
    if opt.get("cvdel", 0): a(f"s_sleep {opt.get('cvdel', 8)}")
    a(f"s_waitcnt vmcnt({(8 if WL else 14 if WM else 24) if UL != 2 else (10 if opt.get('upos', 0) == 0 else 0)})")
    a("ds_write_b16 v5, v33 offset:32")
    a(f"ds_write_b16 v5, v33 offset:{H1+36}")
    if opt.get("qlate", 2) == 1:
        for x in G.ql: a(x.replace("@", "F_QLX").replace("s[40:43]", "s[44:47]").replace("s40,", "s44,").replace("s41,", "s45,").replace("s42,", "s46,").replace("s43,", "s47,"))
        a.label("F_QLX")
    T(a, 2)
    def ldA(nu, nxt):
        return [('ld', 'lgkm', f"ds_read_b64_tr_b16 {vr(AF+4*nu+2*jh,2)}, v{vA} offset:{jh*H1 + nu*512 + 128*nxt}", f"A{nu}.{jh}") for jh in range(2)]
    def bslot(rho, x): return 8 if (rho == 1 and x == 0) else x
    def ldB(rho, x, nxt):
        s = bslot(rho, x)
        return [('ld', 'lgkm', f"ds_read_b128 {vr(BF+4*s,4)}, v{vB} offset:{rho*URHO + x*256 + 64*(1-nxt)}", f"B{s}")]
    def mf(rho, nu, x):
        d = ACC + 32*rho + 4*(nu + x); s = bslot(rho, x)
        return ('use', f"v_mfma_f32_16x16x32_bf16 {vr(d,4)}, {vr(AF+4*nu,4)}, {vr(BF+4*s,4)}, {vr(d,4)}", [f"A{nu}.0", f"A{nu}.1", f"B{s}"])
    pro = []
    for k in range(8): pro += ldB(0, 7-k, 0) + ldA(k, 0)
    for it in pro: a(it[2])
    a("v_mov_b32 v10, 1")
    a("s_mov_b64 s[60:61], 1")
    body = []; pend = []; cnt = [0]
    def emit(m, after):
        body.append(m); pend.extend(after); cnt[0] += 1
        if WL and cnt[0] % 9 == 4:
            pend.extend([I("s_mov_b32 m0, s56"), I("s_add_u32 s56, s56, s59"), I("buffer_load_dwordx4 v12, s[40:43], s57 offen lds"), I("s_add_u32 s57, s57, 65536")])
        for _ in range(2):
            if pend: body.append(pend.pop(0))
    first = True
    for x in range(7, -1, -1):
        for nu in range(0, 8 - x):
            after = []
            if first: after += ldB(1, 0, 0); first = False
            if nu == 7 - x and x >= 1: after += ldB(1, x, 0)
            emit(mf(0, nu, x), after)
    first = True
    for nu in range(8):
        for x in range(7 - nu, -1, -1):
            after = []
            if first: after += ldB(0, 0, 1); first = False
            if x == 7 - nu and x >= 1: after += ldB(0, x, 1)
            if x == 0: after += ldA(nu, 1)
            emit(mf(1, nu, x), after)
    while pend: body.append(pend.pop(0))
    lines = insert_waits([(it[1], it[3]) for it in pro], body)
    a("s_mov_b32 s58, 0")
    a("s_movk_i32 s59, 4096")
    a(".p2align 6")
    a.label("F_VLOOP")
    for l in lines: a(l)
    if WM:
        a("s_cmp_eq_u32 s58, 0")
        a("s_cbranch_scc1 F_VW")
    elif opt.get("ew2", 0):
        a("s_cmp_eq_u32 s58, 0")
        a("s_cbranch_scc1 F_VWX")
    if WL:
        a("s_waitcnt vmcnt(8)")
        a(f"ds_write_b32 v9, v10 offset:{L_EW - L_CV}")
        a("s_cmp_lt_u32 s58, 1")
        a("s_cbranch_scc1 F_VWX")
        a("s_mov_b32 s42, 0")
        a(f"s_mov_b32 s56, {L_X0 + 2*XSZ}")
        a("s_mov_b32 s59, 0")
        a("s_cmp_lt_u32 s58, 2")
        a("s_cbranch_scc1 F_VWX")
        a(f"ds_write_b32 v9, v10 offset:{L_EC - L_CV}")
    else:
        a("s_waitcnt vmcnt(0)")
        a(f"ds_write_b32 v9, v10 offset:{L_EW - L_CV}")
    a.label("F_VWX")
    a(f"v_add_u32 v{vA}, 128, v{vA}")
    a(f"v_subrev_u32 v{vB}, 64, v{vB}")
    a("s_add_u32 s58, s58, 1")
    a("s_cmp_lt_u32 s58, 4")
    a("s_cbranch_scc1 F_VLOOP")
    T(a, 3)
    if WL: a(f"s_mov_b32 s42, {hex(2 << 20)}")
    a("s_waitcnt lgkmcnt(0)")
    a("ds_write_b32 v9, v10")
    P = 16
    for i in range(8): a(f"ds_bpermute_b32 v{P+1+i}, v8, v{ACC+32+4*i+3}")
    a(f"v_mov_b32 v{P}, 0")
    for i in range(8):
        for r in range(1, 4): a(f"v_add_f32 v{ACC+4*i+r}, v{ACC+4*i+r}, v{ACC+32+4*i+r-1}")
    a("s_waitcnt lgkmcnt(0)")
    for i in range(8): a(f"v_cndmask_b32 v{P+12+i}, v{P+1+i}, v{P+i}, s[60:61]")
    for i in range(8): a(f"v_add_f32 v{ACC+4*i}, v{ACC+4*i}, v{P+12+i}")
    Y = 48
    for i in range(8):
        a(f"v_cvt_pk_bf16_f32 v{Y+2*i}, v{ACC+4*i}, v{ACC+4*i+1}")
        a(f"v_cvt_pk_bf16_f32 v{Y+2*i+1}, v{ACC+4*i+2}, v{ACC+4*i+3}")
    a(f"s_add_u32 s53, s63, {hex(WS_YT)}")
    for ip in range(4): a(f"buffer_store_dwordx4 {vr(Y+4*ip,4)}, v1, {WS}, s53 offen offset:{ip*1024} sc1")
    a("s_lshr_b32 s69, s35, 6")
    ctr_addr(a, 4, 69, CT_Y)
    a("s_mov_b32 s69, 1")
    a("s_cmp_ge_u32 s34, 2")
    a("s_cbranch_scc0 F_POST")
    a("v_and_b32 v9, 3, v0")
    a("v_lshlrev_b32 v9, 2, v9")
    a("v_and_b32 v11, 4, v0")
    a("v_lshl_add_u32 v9, v11, 3, v9")
    a(f"v_add_u32 v9, {L_CV}, v9")
    lds_wait(a, "F_WL", 9, 11)
    T(a, 4)
    a(f"s_add_u32 s62, s62, {98304 - 2048}")
    a(f"s_add_u32 s100, s100, {24*65536 - 32768}")
    for k in range(16):
        a(f"s_add_u32 m0, s62, {k*2048}")
        a(f"s_add_u32 s101, s100, {k*32768}")
        a("buffer_load_dwordx4 v12, s[40:43], s101 offen lds")
    T(a, 6)
    a("s_waitcnt vmcnt(16)")
    a("s_atomic_add s69, s[4:5], 0")
    a("s_lshl_b32 s58, s34, 2")
    a(f"s_add_u32 s58, s58, {L_CV + 8}")
    a("v_mov_b32 v9, s58")
    a("s_waitcnt vmcnt(0)")
    T(a, 10)
    a("ds_write_b32 v9, v10")
    a("s_waitcnt lgkmcnt(0)")
    stamp_out(a)
    a("s_endpgm")
    if WM:
        a.label("F_VW")
        lds_wait(a, "F_WGDx", 235, 11, off=L_GD - L_M)
        woc(range(5, 10))
        a("s_branch F_VWX")
    a.label("F_POST")
    a("s_and_b32 s52, s2, 15")
    a("s_lshl_b32 s56, s52, 7")
    T(a, 4)
    a(f"s_mul_i32 s53, s52, {64*CP}")
    a(f"s_add_u32 s53, s53, {hex(WS_YT)}")
    YY = 48; TT = 80; O = 100
    srd(a, 44, 22, 8 << 20)
    a("s_mov_b32 s55, 0xffff0000")
    a("s_add_u32 s56, s56, 2048")
    a("s_waitcnt vmcnt(0)")
    a("s_atomic_add s69, s[4:5], 0")
    QU = 132
    for j in range(8):
        for c in range(8):
            qs = QREG + 4*j + (c >> 1)
            a(f"v_and_b32 v{QU+8*j+c}, s55, v{qs}" if c & 1 else f"v_lshlrev_b32 v{QU+8*j+c}, 16, v{qs}")
    ctr_addr(a, 6, 52, CT_Y)
    ctr_wait(a, "F_P4", 6, 54, 64, 101, sleep=opt.get("sl4", 16))
    T(a, 6)
    for c in range(8):
        a(f"buffer_load_dwordx4 {vr(YY+4*c,4)}, v232, {WS}, s53 offen sc1")
        if c < 7: a(f"s_add_u32 s53, s53, {CP}")
    a("s_waitcnt vmcnt(0)")
    T(a, 7)
    for j in range(8):
        hf, r = j >> 2, j & 3
        for c in range(8):
            qs = QREG + 4*j + (c >> 1); ys = YY + 4*c + (j >> 1)
            a(f"v_and_b32 v{TT+8+c}, s55, v{ys}" if j & 1 else f"v_lshlrev_b32 v{TT+8+c}, 16, v{ys}")
        for c in range(8): a(f"v_mul_f32 v{TT+c}, v{QU+8*j+c}, v{TT+8+c}")
        for m in range(4): a(f"v_cvt_pk_bf16_f32 v{O+4*j+m}, v{TT+2*m}, v{TT+2*m+1}")
        a(f"s_add_u32 s57, s56, {r*4096 + hf*256*4096}")
        a(f"buffer_store_dwordx4 {vr(O+4*j,4)}, v233, s[44:47], s57 offen{OUTB}")
    stamp_out(a)
    a("s_endpgm")

NAME = "concat_heads__linear_attn_block__ssm_conv_h3__prompt"
def build(path, stamp=False, opt=None, verbose=False):
    a = gen(stamp=stamp, opt=opt); a.fix_hazards(verbose=verbose)
    hdr = ["generated by tools/f4.py (hand-written generator): single persistent launch, 256 workgroups x 8 waves",
           "waves 0-3: qkv GEMM -> kv/z partials -> o -> out GEMM ; waves 4-7: LDS-DMA loaders, H3 pre-pass, Toeplitz long conv, gating"]
    txt = make_file(hdr, [(None, (256,1,1), (512,1,1), LDS_TOTAL)], [(NAME + "_kernel", a, {})])
    open(path, "w").write(txt)

def parse_opt(args):
    opt = {}
    for x in args:
        k, v = x.split("=")
        opt[k] = tuple(int(y) for y in v.split(",")) if "," in v else int(v)
    return opt

if __name__ == "__main__":
    import sys
    name = sys.argv[1] if len(sys.argv) > 1 else "f4"
    opt = parse_opt(sys.argv[2:])
    build(f"mb/{name}.s", opt=opt, verbose=(len(sys.argv) == 1))
    build(f"mb/{name}_stamp.s", stamp=True, opt=opt)
```
